```python
import torch

def _softmax(x, axis=-1):
    return torch.softmax(x, dim=axis)
def _gelu(x):
    return torch.nn.functional.gelu(x, approximate="tanh")
def _silu(x):
    return torch.nn.functional.silu(x)
def _sigmoid(x):
    return torch.sigmoid(x)
def _layernorm(x, axis=-1, eps=1e-5):
    m = x.mean(dim=axis, keepdim=True)
    v = x.var(dim=axis, keepdim=True, unbiased=False)
    return (x - m) / torch.sqrt(v + eps)
def _scatter_add(tgt, idx, src, axis=0):
    return tgt.clone().index_add_(axis, idx, src)
def _segment_sum(src, seg, n):
    out = torch.zeros((n,) + src.shape[1:], dtype=src.dtype)
    return out.index_add_(0, seg, src)
def _pad(x, pw):
    flat = tuple(v for pair in reversed(pw) for v in pair)
    return torch.nn.functional.pad(x, flat)

kernel_name = 'interleave_layers__sliding_block_cached__mixer_channel_mlp__decode'

def setup_inputs():

    _w = (lambda a: (lambda t: t.to(torch.bfloat16) if t.is_floating_point() else t)(torch.as_tensor(a)))
    def _A_setup():
        B, Sq, D = 8, 1, 1024
        Hq, Hkv, Sk, Dh = 32, 4, 4096, 128
        assert Hq % Hkv == 0, (Hq, Hkv)
        return {
            "x": _w((lambda *s: torch.randn(*s, dtype=torch.bfloat16) * 0.05)(B, Sq, D)),
            "k_cache": _w((lambda *s: torch.randn(*s, dtype=torch.bfloat16) * 1.6)(B, Hkv, Sk, Dh)),
            "v_cache": _w((lambda *s: torch.randn(*s, dtype=torch.bfloat16) * 1.6)(B, Hkv, Sk, Dh)),
            "wq": _w((lambda *s: torch.randn(*s, dtype=torch.bfloat16) * 1.6)(D, Hq * Dh) * (D ** -0.5)),
            "wo": _w((lambda *s: torch.randn(*s, dtype=torch.bfloat16) * 1.6)(Hq * Dh, D) * ((Hq * Dh) ** -0.5)),
        }
    _A_in = _A_setup()

    def _B_setup():
        B, S, D, F = 8, 1, 1024, 3584
        return {
            "x": _w((lambda *s: torch.randn(*s, dtype=torch.bfloat16) * 0.05)(B, S, D)),
            "w1": _w((lambda *s: torch.randn(*s, dtype=torch.bfloat16) * 3.2)(D, F) * (D ** -0.5)),
            "b1": _w((lambda *s: torch.randn(*s, dtype=torch.bfloat16) * 0.8)(F)),
            "w2": _w((lambda *s: torch.randn(*s, dtype=torch.bfloat16) * 0.4)(F, D) * (F ** -0.5)),
            "b2": _w((lambda *s: torch.randn(*s, dtype=torch.bfloat16) * 0.4)(D)),
        }
    _B_in = _B_setup()

    return {
        "A_x": _A_in["x"],
        "A_k_cache": _A_in["k_cache"],
        "A_v_cache": _A_in["v_cache"],
        "A_wq": _A_in["wq"],
        "A_wo": _A_in["wo"],
        "B_x": _B_in["x"],
        "B_w1": _B_in["w1"],
        "B_b1": _B_in["b1"],
        "B_w2": _B_in["w2"],
        "B_b2": _B_in["b2"],
    }

def reference(A_x, A_k_cache, A_v_cache, A_wq, A_wo, B_x, B_w1, B_b1, B_w2, B_b2):
    def _A_ref(x, k_cache, v_cache, wq, wo):
        B, Sq, D = x.shape
        Hq, Dh = 32, 128
        Hkv, Sk = k_cache.shape[1], k_cache.shape[2]
        W = min(4096, max(256, Sk // 4))
        rep = Hq // Hkv
        q = (lambda x, *d: x.permute(*d))((x @ wq).reshape(B, Sq, Hq, Dh), 0, 2, 1, 3)
        k = (lambda x, n, axis: torch.repeat_interleave(x, n, dim=axis))(k_cache[:, :, Sk - W:, :], rep, axis=1)
        v = (lambda x, n, axis: torch.repeat_interleave(x, n, dim=axis))(v_cache[:, :, Sk - W:, :], rep, axis=1)
        scores = torch.einsum("bhqd,bhkd->bhqk", q, k) * (Dh ** -0.5)
        p = _softmax(scores, axis=-1)
        o = torch.einsum("bhqk,bhkd->bhqd", p, v)
        return (lambda x, *d: x.permute(*d))(o, 0, 2, 1, 3).reshape(B, Sq, Hq * Dh) @ wo

    def _B_ref(x, w1, b1, w2, b2):
        y = _layernorm(x, axis=-1)
        h = _gelu(torch.einsum("bsd,df->bsf", y, w1) + b1)
        return torch.einsum("bsf,fd->bsd", h, w2) + b2

    x = A_x
    x = x + _A_ref(_layernorm(x, axis=-1), A_k_cache, A_v_cache, A_wq, A_wo)
    x = x + _B_ref(_layernorm(x, axis=-1), B_w1, B_b1, B_w2, B_b2)
    x = x + _A_ref(_layernorm(x, axis=-1), A_k_cache, A_v_cache, A_wq, A_wo)
    x = x + _B_ref(_layernorm(x, axis=-1), B_w1, B_b1, B_w2, B_b2)
    return x
```

```python
import re

TRANS = ("v_exp_f32", "v_log_f32", "v_rcp_f32", "v_rsq_f32", "v_sqrt_f32", "v_sin_f32", "v_cos_f32")

def regs_of(tok):
    tok = tok.strip()
    tok = re.sub(r"^-|^abs\(|\)$|^\|", "", tok).strip("|")
    m = re.fullmatch(r"([vsa])(\d+)", tok)
    if m: return {(m.group(1), int(m.group(2)))}
    m = re.fullmatch(r"([vsa])\[(\d+):(\d+)\]", tok)
    if m: return {(m.group(1), k) for k in range(int(m.group(2)), int(m.group(3)) + 1)}
    if tok in ("vcc", "vcc_lo", "vcc_hi"): return {("x", "vcc")}
    if tok in ("exec", "exec_lo", "exec_hi"): return {("x", "exec")}
    if tok == "m0": return {("x", "m0")}
    return set()

class Ins:
    def __init__(self, text):
        self.text = text
        t = text.split(";")[0].strip()
        parts = t.split(None, 1)
        self.op = parts[0]
        rest = parts[1] if len(parts) > 1 else ""
        ops = [o.strip() for o in re.split(r",(?![^\[]*\])", rest)] if rest else []
        mods = ""
        if ops:
            sp = ops[-1].split(None, 1)
            ops[-1] = sp[0]
            mods = sp[1] if len(sp) > 1 else ""
        self.ops = ops; self.mods = mods
        op = self.op
        self.mfma = op.startswith("v_mfma")
        self.valu = op.startswith("v_") and not self.mfma
        self.vmem = op.startswith("global_") or op.startswith("buffer_")
        self.ds = op.startswith("ds_")
        self.salu = op.startswith("s_")
        self.trans = op in TRANS or op.replace("_e32", "") in TRANS
        self.dpp = "_dpp" in op
        self.perml = op.startswith("v_permlane")
        self.rdlane = op.startswith("v_readlane") or op.startswith("v_readfirstlane")
        self.ws = 1
        if op == "s_nop": self.ws = int(ops[0], 0) + 1
        R = [regs_of(o) for o in ops]
        self.w = set(); self.r = set(); self.srcC = set(); self.ab = set(); self.sdata = set(); self.wide = False
        self.ldsdma = False
        if self.mfma:
            self.w = R[0]; self.ab = R[1] | R[2]; self.srcC = R[3]; self.r = self.ab | self.srcC
        elif self.valu:
            if self.perml:
                self.w = R[0] | R[1]; self.r = R[0] | R[1]
            else:
                self.w = set(R[0]); self.r = set().union(*R[1:]) if len(R) > 1 else set()
                if op.startswith("v_add_co") or op.startswith("v_addc_co") or op.startswith("v_sub_co"):
                    self.w |= R[1]; self.r = set().union(*R[2:])
                if op.startswith("v_fmac") or self.dpp or op.startswith("v_writelane"): self.r |= R[0]
                if op.startswith("v_cndmask") and len(ops) == 3: self.r |= {("x", "vcc")}
                if op.startswith("v_cmpx"): self.w |= {("x", "exec")}
        elif self.vmem:
            if "_lds_" in op or " lds" in (" " + mods):
                self.ldsdma = True; self.r = set().union(*R) | {("x", "m0")}
            elif "load" in op:
                self.w = R[0]; self.r = set().union(*R[1:])
            else:
                if op.startswith("global_"): self.sdata = R[1]
                else: self.sdata = R[0]
                self.r = set().union(*R)
                self.wide = "x4" in op or "x3" in op
        elif self.ds:
            if "read" in op or "permute" in op or "swizzle" in op:
                self.w = R[0]; self.r = set().union(*R[1:])
            else:
                self.r = set().union(*R)
        elif self.salu:
            if op.startswith("s_cmp") or op.startswith("s_cbranch") or op in ("s_branch", "s_waitcnt", "s_nop", "s_barrier", "s_sleep", "s_endpgm", "s_setprio", "s_bitcmp1_b32", "s_bitcmp0_b32"):
                self.r = set().union(*R) if R else set()
            else:
                self.w = R[0] if R else set(); self.r = set().union(*R[1:]) if len(R) > 1 else set()
                if "saveexec" in op: self.w = self.w | {("x", "exec")}

def isv(s): return {x for x in s if x[0] in "va"}
def iss(s): return {x for x in s if x[0] == "s" or x == ("x", "vcc")}

def need(p, c):
    n = 0
    if p.mfma:
        if c.mfma:
            if p.w & c.ab: n = max(n, 8)
            if p.w & c.srcC and not (p.w == c.srcC): n = max(n, 6)
            if p.w & c.w and not (p.w == c.srcC): n = max(n, 8)
        elif c.valu or c.vmem or c.ds:
            if p.w & (c.r | c.w): n = max(n, 8)
        if c.valu and (p.srcC & c.w): n = max(n, 3)
    if p.valu:
        pv = isv(p.w); ps = iss(p.w)
        if c.mfma and pv & c.r: n = max(n, 2)
        if c.mfma and ("x", "exec") in p.w: n = max(n, 4)
        if (c.dpp or c.perml) and pv & c.r: n = max(n, 2)
        if c.rdlane and pv & c.r: n = max(n, 1)
        if p.trans and c.valu and not c.trans and pv & c.r: n = max(n, 1)
        if p.trans and c.valu and c.trans and pv & c.r: n = max(n, 1)
        if ps:
            if c.valu and ps & c.r: n = max(n, 4 if (c.rdlane or c.op.startswith("v_writelane")) else 2)
            if c.vmem and ps & c.r: n = max(n, 5)
            if c.salu and ps & c.r and not c.op.startswith("s_cbranch"): n = max(n, 1)
        if ("x", "exec") in p.w and c.valu: n = max(n, 5 if c.dpp else 4 if (c.perml or c.rdlane) else 2)
    if p.vmem and p.wide and (c.valu or c.mfma or c.ds or c.vmem) and p.sdata & c.w: n = max(n, 2)
    if p.salu and ("x", "m0") in p.w and c.ldsdma: n = max(n, 1)
    return n

class Asm:
    def __init__(self):
        self.lines = []
        self.hists = [[]]
        self.pending = {}
        self.nlab = 0
        self.nops = 0
    def raw(self, s): self.lines.append(s)
    def c(self, s): self.lines.append("    ; " + s)
    def _push(self, ins):
        for h in self.hists:
            h.append(ins)
            if len(h) > 24: del h[0]
        uniq = []
        for h in self.hists:
            if not any(len(h) == len(u) == 24 and all(a is b for a, b in zip(h, u)) for u in uniq): uniq.append(h)
        self.hists = uniq
    def __call__(self, text):
        ins = Ins(text)
        req = 0
        for h in self.hists:
            dist = 0
            for p in reversed(h):
                nd = need(p, ins)
                if nd > dist: req = max(req, nd - dist)
                dist += p.ws
                if dist >= 20: break
        while req > 0:
            k = min(req, 16)
            nop = Ins(f"s_nop {k-1}")
            self.lines.append(f"    s_nop {k-1}")
            self._push(nop); req -= k; self.nops += 1
        self.lines.append("    " + text)
        self._push(ins)
        if ins.op.startswith("s_cbranch") or ins.op == "s_branch":
            tgt = ins.ops[0]
            self.pending.setdefault(tgt, []).extend([list(h) for h in self.hists])
            if ins.op == "s_branch": self.hists = []
    def label(self, name):
        self.lines.append(name + ":")
        self.hists = self.hists + self.pending.pop(name, [])
        if not self.hists: self.hists = [[]]
    def newlabel(self, base="L"):
        self.nlab += 1
        return f"{base}_{self.nlab}"
    def text(self): return "\n".join(self.lines) + "\n"

class Regs:
    def __init__(self, kind, lo, hi):
        self.kind = kind; self.next = lo; self.hi = hi; self.names = {}
    def alloc(self, name, n=1, align=None):
        if align is None: align = 1 if n == 1 else 2 if n == 2 else 4
        self.next = (self.next + align - 1) // align * align
        r = self.next; self.next += n
        assert self.next <= self.hi, f"out of {self.kind} regs at {name}"
        self.names[name] = (r, n)
        return r
```

```python
import sys, math, struct
sys.path.insert(0, "gen")
from asmlib import Asm, Regs

KN = "interleave_layers__sliding_block_cached__mixer_channel_mlp__decode_kernel"

DEFAULTS = dict(TIMING=0, D1=10, D2=14, D5=10, DEPTH=28, FLAV="nt", LIMIT=40000, FORCE_SLOW=0)

def f32(x): return struct.unpack("<I", struct.pack("<f", x))[0]

LSTRIDE = 0x240000
E1 = 0x000000; E2 = 0x100000; E5 = 0x180000; STQ = 0x1F0000; ML = 0x200000; ST1 = 0x208000
XSA = 0x20C000; XSB = 0x210000
SH = 2 * LSTRIDE
E3 = SH; ECQ = SH + 0x100000; EC1 = SH + 0x120000; XID = SH + 0x140000; EPOCH = SH + 0x141000
TSOFF = 0x8000000
R0, R1, R2, R3 = 0, 32768, 65536, 98304
SC = 131072
QX = SC; OX = SC + 2304; HX = SC + 4608; OW = SC + 6912; MLW = OW + 4 * 4224; FL = MLW + 256
FL_Q, FL_OW, FL_O, FL_H, FL_RED, FL_WQC, FL_KC, FL_T = 0, 16, 32, 48, 64, 80, 96, 112
LDS_BYTES = 163840
TAGC = (0x00, 0x55, 0xA3, 0xCE)
KAPPA = math.log2(math.e) / math.sqrt(128.0)
GK1 = -2.0 * math.log2(math.e) * math.sqrt(2.0 / math.pi)
GK2 = GK1 * 0.044715

def generate(P):
    a = Asm()
    V = Regs("v", 1, 256); S = Regs("s", 3, 100)
    def v(n, k=1): return V.alloc(n, k)
    def s(n, k=1): return S.alloc(n, k)
    def vr(b, n): return f"v[{b}:{b+n-1}]"
    def sr(b, n=2): return f"s[{b}:{b+n-1}]"
    sX = s("x", 2); sK = s("k", 2); sVv = s("v", 2); sWQ = s("wq", 2); sWO = s("wo", 2)
    sW1 = s("w1", 2); sB1 = s("b1", 2); sW2 = s("w2", 2); sB2 = s("b2", 2); sOUT = s("out", 2)
    sWS = s("ws", 2); sL = s("L", 2)
    sI = s("i"); sR = s("r"); sG = s("g"); sS = s("s"); sW = s("w")
    sEP = s("ep"); sLay = s("lay"); sSeq = s("seq"); sMode = s("mode"); sCnt = s("cnt"); sVrd = s("vread")
    sTA = s("TA", 4); sTB = s("TB", 4)
    sT0 = s("t0"); sT1 = s("t1"); sT2 = s("t2"); sT3 = s("t3")
    sMQ = [s(f"mq{k}", 2) for k in range(3)]; sM1 = [s(f"m1{k}", 2) for k in range(3)]
    sH3 = s("h3", 2); sH5 = s("h5", 2)
    sKap = s("kap"); sEps = s("eps"); sInvN = s("invn"); sG1 = s("g1"); sG2 = s("g2"); sXt = s("xt"); sXcc = s("xcc")
    sTM = s("tm", 2)
    vL = 0
    t = [v(f"t{k}") for k in range(14)]
    vFF = v("FF")
    XS_B = v("XSB", 16); ACC = v("ACC", 36); G = v("G", 32); G2 = ACC; XB = G + 16; DD = ACC + 32
    SEL1 = v("SEL1", 4); SEL2 = v("SEL2", 4); ONES = v("ONES", 4); CQ = v("CQ", 4); C1 = v("C1", 4); B1 = v("B1", 4)
    WQ = v("WQ", 32); KK = v("KK", 32); TT = v("TT", 32)
    XRES = v("XRES", 2); B2 = v("B2", 2)
    vTS = v("TS")
    names = ["E1s", "E1l", "SQs", "SQl", "S1a", "S1b", "E2s", "MLs", "MLl", "E2l", "E3s", "E3l",
             "XSs", "XSl", "E5s", "E5l", "TRS", "TRV0", "TRV1", "TRV2", "TRV3",
             "QXW", "XRD", "OXW", "HXW", "OWW", "OWR", "MLWW", "MLWR", "FLG", "FLW"]
    A = {n: v("a" + n) for n in names}
    A["CQs"] = C1; A["CQl"] = C1 + 1; A["C1s"] = C1 + 2
    A["OUT"] = t[9]; A["C1l"] = t[9]
    assert t[1] % 2 == 0
    stamp_idx = [0]
    stamp_names = []
    def stamp(name):
        if not P["TIMING"]: return
        k = stamp_idx[0]; stamp_idx[0] += 1; stamp_names.append(name)
        a(f"s_memrealtime {sr(sTM)}"); a("s_waitcnt lgkmcnt(0)")
        a(f"s_lshl_b32 s{sTM+1}, s{sLay}, 5"); a(f"s_add_u32 m0, s{sTM+1}, {k}")
        a(f"v_writelane_b32 v{vTS}, s{sTM}, m0")
    def execm(lo, hi=None):
        if hi is None: hi = lo
        if lo == 0xFFFFFFFF and hi == 0xFFFFFFFF: a("s_mov_b64 exec, -1")
        else:
            a(f"s_mov_b32 exec_lo, {lo:#x}"); a(f"s_mov_b32 exec_hi, {hi:#x}")
    FULL = 0xFFFFFFFF; MC8 = 0x00FF00FF; MEQ8 = 0x01000100
    def retry(lbl):
        ok = a.newlabel("ok")
        a(f"s_cbranch_vccz {ok}")
        a(f"s_add_u32 s{sCnt}, s{sCnt}, 1")
        a(f"s_cmp_lt_u32 s{sCnt}, {P['LIMIT']}")
        a(f"s_cbranch_scc1 {lbl}")
        a("s_branch L_end")
        a.label(ok)
    def lds_wait4(off, reads=None):
        lb = a.newlabel("lw"); a.label(lb)
        a(f"ds_read_b128 {vr(t[3],4)}, v{A['FLG']} offset:{off}")
        if reads: reads()
        n = 0
        a("s_waitcnt lgkmcnt(0)")
        a(f"v_min3_u32 v{t[3]}, v{t[3]}, v{t[4]}, v{t[5]}")
        a(f"v_min_u32 v{t[3]}, v{t[3]}, v{t[6]}")
        a(f"v_cmp_gt_u32 vcc, s{sSeq}, v{t[3]}")
        retry(lb)
    def lds_wait1(off, val):
        lb = a.newlabel("lw"); a.label(lb)
        a(f"ds_read_b32 v{t[3]}, v{A['FLG']} offset:{off}")
        a("s_waitcnt lgkmcnt(0)")
        a(f"v_cmp_gt_u32 vcc, {val}, v{t[3]}")
        retry(lb)
    def lds_signal(off):
        a(f"v_mov_b32 v{t[7]}, s{sSeq}")
        a(f"ds_write_b32 v{A['FLW']}, v{t[7]} offset:{off}")
    assert t[3] % 4 == 0, t[3]
    def tr_read_std(dst, areg, region):
        for tt in range(2):
            for ks in range(4):
                for hh in range(2):
                    a(f"ds_read_b64_tr_b16 {vr(dst + (tt*4+ks)*4 + hh*2, 2)}, v{areg} offset:{region + tt*32 + (32*ks+16*hh)*256}")
    def tr_read_v():
        for dt in range(8):
            for hh in range(2):
                a(f"ds_read_b64_tr_b16 {vr(TT + dt*4 + hh*2, 2)}, v{A['TRV%d' % (dt>>1)]} offset:{(dt&1)*32 + hh*4096}")
    def gemm8(wreg, xreg):
        for ks in range(4):
            for tt in range(2):
                c_in = "0" if ks == 0 else vr(ACC + tt*4, 4)
                a(f"v_mfma_f32_16x16x32_bf16 {vr(ACC+tt*4,4)}, {vr(wreg+(tt*4+ks)*4,4)}, {vr(xreg+ks*4,4)}, {c_in}")
    def tag_into(dst, src, tg):
        for j in range(4): a(f"v_bfi_b32 v{dst+j}, v{vFF}, s{tg+j}, v{src+j}")
    def tag_check(acc, src, tg, first):
        for j in range(4):
            if first and j == 0: a(f"v_xor_b32 v{acc}, s{tg}, v{src}")
            else: a(f"v_bitop3_b32 v{acc}, v{acc}, v{src+j}, s{tg+j} bitop3:0xf6")
    def tag_finish(acc):
        a(f"v_and_b32 v{acc}, 0xff, v{acc}"); a(f"v_cmp_ne_u32 vcc, 0, v{acc}")
    def merge_tiles():
        for j in range(4): a(f"v_mov_b32_dpp v{ACC+j}, v{ACC+4+j} row_shr:8 row_mask:0xf bank_mask:0xf")
    def store_mode(instr):
        l1 = a.newlabel("st"); l2 = a.newlabel("st")
        a(f"s_cmp_eq_u32 s{sMode}, 0"); a(f"s_cbranch_scc1 {l1}")
        a(instr); a(f"s_branch {l2}")
        a.label(l1); a(instr + " sc1"); a.label(l2)
    def red_x16(x, tmp, op="v_add_f32"):
        a(f"v_mov_b32 v{tmp}, v{x}"); a(f"v_permlane16_swap_b32 v{x}, v{tmp}"); a(f"{op} v{x}, v{x}, v{tmp}")
    def red_x32(x, tmp, op="v_add_f32"):
        a(f"v_mov_b32 v{tmp}, v{x}"); a(f"v_permlane32_swap_b32 v{x}, v{tmp}"); a(f"{op} v{x}, v{x}, v{tmp}")
    def dpp(op, d, x, y, ctl): a(f"{op}_dpp v{d}, v{x}, v{y} {ctl} row_mask:0xf bank_mask:0xf")
    def set_tags():
        a(f"s_add_u32 s{sT0}, s{sEP}, 1"); a(f"s_lshl_b32 s{sT0}, s{sT0}, 3"); a(f"s_lshl_b32 s{sT1}, s{sLay}, 1")
        a(f"s_add_u32 s{sT0}, s{sT0}, s{sT1}"); a(f"s_and_b32 s{sT0}, s{sT0}, 0xff")
        for j in range(4): a(f"s_xor_b32 s{sTA+j}, s{sT0}, {TAGC[j]:#x}")
        for j in range(4): a(f"s_xor_b32 s{sTB+j}, s{sTA+j}, 1")

    a.raw(f"; @launch grid=(256,1,1) block=(320,1,1) lds={LDS_BYTES}")
    a.raw('.amdgcn_target "amdgcn-amd-amdhsa--gfx950"\n.text')
    a.raw(f".globl {KN}\n.p2align 8\n.type {KN},@function\n{KN}:")
    a("s_cmp_ge_u32 s2, 256"); a("s_cbranch_scc1 L_end")
    a(f"s_load_dwordx2 {sr(sWQ)}, s[0:1], 24")
    a(f"s_load_dwordx2 {sr(sK)}, s[0:1], 8")
    a(f"s_load_dwordx2 {sr(sVv)}, s[0:1], 16")
    a(f"s_load_dwordx2 {sr(sWO)}, s[0:1], 32")
    a(f"s_load_dwordx2 {sr(sW1)}, s[0:1], 48")
    a(f"s_load_dwordx2 {sr(sW2)}, s[0:1], 64")
    a(f"s_load_dwordx2 {sr(sWS)}, s[0:1], 96")
    a(f"s_load_dwordx2 {sr(sX)}, s[0:1], 0")
    a(f"s_load_dwordx2 {sr(sB1)}, s[0:1], 56")
    a(f"s_load_dwordx2 {sr(sB2)}, s[0:1], 72")
    a(f"s_load_dwordx2 {sr(sOUT)}, s[0:1], 80")
    a(f"v_lshrrev_b32 v{t[0]}, 6, v0")
    a(f"v_and_b32 v0, 63, v0")
    a(f"v_readfirstlane_b32 s{sW}, v{t[0]}")
    a(f"s_and_b32 s{sI}, s2, 7"); a(f"s_lshr_b32 s{sR}, s2, 3")
    a(f"s_lshr_b32 s{sG}, s{sR}, 3"); a(f"s_and_b32 s{sS}, s{sR}, 7")
    a(f"s_mov_b32 s{sLay}, 0"); a(f"s_mov_b32 s{sCnt}, 0")
    a(f"v_mov_b32 v{A['FLG']}, {FL}")
    if P["TIMING"]: a(f"v_mov_b32 v{vTS}, 0")
    stamp("start")
    a(f"s_cmp_eq_u32 s{sW}, 4"); a("s_cbranch_scc1 L_loader")

    cC, cKQ, cB8, cH3, cH5, cL31, cRR, cCC = t[0], t[1], t[2], t[3], t[4], t[5], t[6], t[7]
    x0, x1 = t[8], t[9]
    a(f"v_and_b32 v{cC}, 15, v0"); a(f"v_lshrrev_b32 v{cKQ}, 4, v0"); a(f"v_and_b32 v{cB8}, 7, v0")
    a(f"v_bfe_u32 v{cH3}, v0, 3, 1"); a(f"v_lshrrev_b32 v{cH5}, 5, v0"); a(f"v_and_b32 v{cL31}, 31, v0")
    a(f"v_bfe_u32 v{cRR}, v0, 2, 2"); a(f"v_and_b32 v{cCC}, 3, v0")
    a(f"v_lshlrev_b32 v{x0}, 2, v0"); a(f"v_add_u32 v{x0}, {FL}, v{x0}"); a(f"v_mov_b32 v{x1}, 0")
    lz = a.newlabel("nz"); a(f"s_cmp_lg_u32 s{sW}, 0"); a(f"s_cbranch_scc1 {lz}")
    a(f"ds_write_b32 v{x0}, v{x1}")
    a.label(lz)
    def uni(terms, const):
        a(f"s_mov_b32 s{sT0}, {const:#x}")
        for sreg, mul in terms:
            a(f"s_mul_i32 s{sT1}, s{sreg}, {mul}"); a(f"s_add_u32 s{sT0}, s{sT0}, s{sT1}")
    def addr(name, lane_terms, terms, const):
        d = A[name]
        uni(terms, const)
        a(f"v_mov_b32 v{d}, s{sT0}")
        for vreg, mul in lane_terms:
            sh = int(math.log2(mul)) if mul & (mul - 1) == 0 else None
            if sh is not None: a(f"v_lshl_add_u32 v{d}, v{vreg}, {sh}, v{d}")
            else:
                a(f"s_mov_b32 s{sT1}, {mul}"); a(f"v_mad_u32_u24 v{d}, v{vreg}, s{sT1}, v{d}")
    sS1 = sT2; sS0 = sT3
    a(f"s_lshr_b32 s{sS1}, s{sS}, 1"); a(f"s_and_b32 s{sS0}, s{sS}, 1")
    addr("E1s", [(cB8, 131072), (cH3, 64), (cKQ, 16)], [(sG, 32768), (sS1, 8192), (sI, 1024), (sS0, 512), (sW, 128)], E1)
    addr("CQs", [(cKQ, 16)], [(sG, 32768), (sS1, 8192), (sI, 1024), (sS0, 512), (sW, 128)], ECQ)
    addr("E1l", [(vL, 16)], [(sI, 131072), (sG, 32768), (sW, 8192)], E1 + 4096)
    addr("CQl", [(vL, 16)], [(sG, 32768), (sW, 8192)], ECQ + 4096)
    addr("SQs", [(cKQ, 128), (cC, 16)], [(sG, 16384), (sI, 2048), (sW, 512)], STQ)
    a(f"s_lshr_b32 s{sT2}, s{sI}, 2")
    addr("SQl", [(cB8, 2048), (cKQ, 512)], [(sG, 16384), (sT2, 128), (sI, 16)], STQ)
    a(f"s_sub_u32 s{sT2}, 2, s{sT2}"); a(f"s_lshl_b32 s{sT2}, s{sT2}, 7")
    a(f"v_mad_u32_u24 v{A['SQl']}, v{cH3}, s{sT2}, v{A['SQl']}")
    a(f"v_lshrrev_b32 v{x0}, 3, v0"); a(f"v_bfe_u32 v{x1}, v0, 2, 1")
    addr("S1a", [(x0, 512), (x1, 128), (cB8, 16)], [], ST1)
    addr("S1b", [(x0, 512), (cB8, 16)], [], ST1 + 256)
    addr("E2s", [(cH5, 16384), (cL31, 8)], [(sG, 131072), (sW, 32768), (sI, 2048), (sS, 256)], E2)
    addr("MLs", [(cH5, 8)], [(sG, 8192), (sI, 1024), (sS, 128), (sW, 16)], ML)
    addr("MLl", [(cKQ, 128)], [(sG, 8192), (sW, 2048), (sS, 8)], ML)
    addr("E2l", [(vL, 16)], [(sR, 16384), (sW, 4096)], E2)
    addr("E3s", [(cH3, 16384), (cKQ, 4096), (cB8, 16)], [(sI, 131072), (sW, 32768), (sR, 128)], E3)
    addr("E3l", [(vL, 16)], [(sI, 131072), (sR, 4096)], E3)
    a(f"s_and_b32 s{sT2}, s{sR}, 3"); a(f"s_bfe_u32 s{sT3}, s{sR}, 0x10002")
    addr("XSs", [(cB8, 16), (cH5, 4)], [(sI, 2048), (sG, 512), (sT2, 128), (sT3, 8)], 0)
    addr("XSl", [(cKQ, 128), (cC, 16)], [(sI, 2048)], 0)
    addr("E5s", [(cKQ, 128), (cC, 16)], [(sR, 16384), (sW, 4096), (sI, 512)], E5)
    addr("E5l", [(cKQ, 512), (cC, 16)], [(sR, 16384), (sW, 4096)], E5)
    addr("C1s", [(cKQ, 16)], [(sR, 4096), (sW, 1024), (sI, 128)], EC1)
    a(f"v_and_b32 v{x0}, 1, v{cKQ}")
    addr("HXW", [(cH5, 288), (cH3, 144), (cB8, 16), (x0, 8)], [(sW, 576)], HX)
    b1off = t[10]
    uni([(sR, 256), (sW, 64)], 0)
    a(f"v_mov_b32 v{b1off}, s{sT0}"); a(f"v_lshl_add_u32 v{b1off}, v{x0}, 5, v{b1off}")
    a(f"v_lshl_add_u32 v{b1off}, v{cH5}, 4, v{b1off}"); a(f"v_lshl_add_u32 v{b1off}, v{cH3}, 3, v{b1off}")
    a(f"v_lshrrev_b32 v{x1}, 2, v{cC}")
    addr("OXW", [(x1, 576), (x0, 144), (cH5, 16)], [(sW, 32)], OX)
    a(f"v_and_b32 v{x1}, 1, v{cC}"); a(f"s_mov_b32 s{sT1}, 288"); a(f"v_mad_u32_u24 v{A['OXW']}, v{x1}, s{sT1}, v{A['OXW']}")
    a(f"v_bfe_u32 v{x1}, v{cC}, 1, 1"); a(f"v_lshl_add_u32 v{A['OXW']}, v{x1}, 3, v{A['OXW']}")
    a(f"v_lshrrev_b32 v{x0}, 1, v{cL31}"); a(f"v_and_b32 v{x1}, 1, v0")
    addr("QXW", [(x0, 144), (cH5, 16), (x1, 8)], [(sW, 32)], QX)
    addr("XRD", [(cKQ, 144), (cB8, 16)], [], SC)
    addr("OWW", [(cC, 528), (cKQ, 16)], [(sW, 4224)], OW)
    addr("OWR", [(cH5, 528), (cL31, 16)], [(sW, 1056)], OW)
    addr("MLWW", [(cC, 32)], [(sW, 8)], MLW)
    addr("MLWR", [(cH5, 32)], [(sW, 64)], MLW)
    addr("FLW", [], [(sW, 4)], FL)
    a(f"v_lshrrev_b32 v{x0}, 2, v0")
    a(f"v_lshlrev_b32 v{x0}, 8, v{x0}")
    a(f"v_lshrrev_b32 v{x1}, 1, v{cCC}"); a(f"v_lshl_add_u32 v{x0}, v{x1}, 4, v{x0}")
    a(f"v_and_b32 v{x1}, 1, v{cCC}"); a(f"v_lshl_add_u32 v{x0}, v{x1}, 3, v{x0}")
    a(f"v_xor_b32 v{x1}, s{sW}, v{cRR}"); a(f"v_lshl_add_u32 v{A['TRS']}, v{x1}, 6, v{x0}")
    a(f"s_lshl_b32 s{sT0}, s{sW}, 13"); a(f"s_add_u32 s{sT0}, s{sT0}, {R2}"); a(f"v_add_u32 v{x0}, s{sT0}, v{x0}")
    for k in range(4):
        a(f"v_xor_b32 v{x1}, {k}, v{cRR}"); a(f"v_lshl_add_u32 v{A['TRV%d' % k]}, v{x1}, 6, v{x0}")
    a(f"v_mov_b32 v{vFF}, 0xff")
    for j in range(4): a(f"v_mov_b32 v{ONES+j}, 0x3f803f80")
    for j in range(4):
        for (dst, base) in ((SEL1, 0), (SEL2, 8)):
            a(f"v_mov_b32 v{dst+j}, 0")
            a(f"v_cmp_eq_u32 vcc, {base+2*j}, v{cC}"); a(f"v_mov_b32 v{x0}, 0xffff"); a(f"v_cndmask_b32 v{dst+j}, v{dst+j}, v{x0}, vcc")
            a(f"v_cmp_eq_u32 vcc, {base+2*j+1}, v{cC}"); a(f"v_mov_b32 v{x0}, 0xffff0000"); a(f"v_cndmask_b32 v{dst+j}, v{dst+j}, v{x0}, vcc")
    a(f"v_cmp_eq_u32 vcc, 8, v{cC}"); a(f"v_mov_b32 v{x0}, 0")
    a(f"v_cndmask_b32 v{x0}, v{x0}, v{ONES}, vcc")
    for j in range(16): a(f"v_mov_b32 v{XS_B+j}, v{x0}")
    a(f"s_and_b32 s{sT0}, s{sI}, 3"); a(f"v_mov_b32 v{x0}, s{sT0}"); a(f"v_cmp_eq_u32 vcc, 0, v{cH3}")
    a(f"v_cndmask_b32 v{x0}, 0, v{x0}, vcc")
    for k in range(3): a(f"v_cmp_eq_u32 {sr(sMQ[k])}, {k+1}, v{x0}")
    for k in range(3): a(f"v_cmp_eq_u32 {sr(sM1[k])}, {k+1}, v{cCC}")
    a(f"v_cmp_eq_u32 {sr(sH3)}, 1, v{cH3}"); a(f"v_cmp_eq_u32 {sr(sH5)}, 1, v{cH5}")
    a(f"s_mov_b32 s{sKap}, {f32(KAPPA):#x}"); a(f"s_mov_b32 s{sEps}, {f32(1e-5):#x}"); a(f"s_mov_b32 s{sInvN}, {f32(1/1024):#x}")
    a(f"s_mov_b32 s{sG1}, {f32(GK1):#x}"); a(f"s_mov_b32 s{sG2}, {f32(GK2):#x}")
    a(f"s_mov_b32 s{sSeq}, 1"); a(f"s_mov_b32 s{sVrd}, 0")
    xoff = t[11]
    uni([(sI, 256)], 0)
    a(f"v_mov_b32 v{xoff}, s{sT0}"); a(f"v_lshl_add_u32 v{xoff}, v{cC}, 11, v{xoff}"); a(f"v_lshl_add_u32 v{xoff}, v{cKQ}, 3, v{xoff}")
    b2off = t[12]
    uni([(sI, 256), (sR, 8)], 0)
    a(f"v_mov_b32 v{b2off}, s{sT0}"); a(f"v_lshl_add_u32 v{b2off}, v{cH5}, 2, v{b2off}")
    def out_addr():
        a(f"v_and_b32 v{t[0]}, 7, v0"); a(f"v_lshrrev_b32 v{t[1]}, 5, v0")
        addr("OUT", [(t[0], 2048), (t[1], 4)], [(sI, 256), (sR, 8)], 0)
    out_addr()
    a("s_waitcnt lgkmcnt(0)")
    a("s_barrier")
    a(f"s_add_u32 s{sT0}, s{sWS}, {EPOCH:#x}"); a(f"s_addc_u32 s{sT1}, s{sWS+1}, 0")
    assert sT0 % 2 == 0
    a(f"s_load_dword s{sEP}, {sr(sT0)}, 0")
    a(f"s_mov_b32 s{sL}, s{sWS}"); a(f"s_mov_b32 s{sL+1}, s{sWS+1}")
    a(f"s_getreg_b32 s{sXcc}, hwreg(HW_REG_XCC_ID)"); a(f"s_and_b32 s{sXcc}, s{sXcc}, 15")
    if P["FORCE_SLOW"]: a(f"s_mov_b32 s{sXcc}, s2")
    execm(MC8)
    for ks in range(4):
        for hh in range(2):
            a(f"global_load_dwordx2 {vr(XS_B+ks*4+hh*2,2)}, v{xoff}, {sr(sX)} offset:{ks*64+hh*32}")
    execm(FULL)
    a(f"global_load_dword v{XRES+1}, v{A['OUT']}, {sr(sX)}")
    a(f"global_load_dword v{B2+1}, v{b2off}, {sr(sB2)}")
    lb1 = a.newlabel("nob1")
    a(f"s_cmp_ge_u32 s{sR}, 28"); a(f"s_cbranch_scc1 {lb1}")
    a(f"global_load_dwordx2 {vr(B1+2,2)}, v{b1off}, {sr(sB1)}")
    a.label(lb1)
    for j in range(4): a(f"v_mov_b32 v{G+j}, -1")
    a(f"s_add_u32 s{sT2}, s{sWS}, {LSTRIDE:#x}"); a(f"s_addc_u32 s{sT3}, s{sWS+1}, 0")
    assert sT2 % 2 == 0
    for base in (sWS, sT2):
        a(f"global_store_dwordx2 v{A['E2s']}, {vr(G,2)}, {sr(base)} sc1")
    execm(1)
    for base in (sWS, sT2):
        a(f"global_store_dwordx2 v{A['MLs']}, {vr(G,2)}, {sr(base)} sc1")
    lb5 = a.newlabel("noe5")
    a(f"s_cmp_ge_u32 s{sR}, 28"); a(f"s_cbranch_scc1 {lb5}")
    execm(MC8)
    for base in (sWS, sT2):
        a(f"global_store_dwordx4 v{A['E5s']}, {vr(G,4)}, {sr(base)} sc1")
    a.label(lb5)
    execm(FULL)
    a(f"s_lshl_b32 s{sT0}, s{sW}, 10"); a(f"v_add_u32 v{t[13]}, s{sT0}, v{A['E3l']}")
    a(f"global_load_dwordx4 {vr(G+4,4)}, v{t[13]}, {sr(sWS)} sc1")
    a("s_waitcnt lgkmcnt(0)")
    set_tags()
    a(f"s_xor_b32 s{sXt}, s{sEP}, 0x5bd1e995"); a(f"s_add_u32 s{sXt}, s{sXt}, 0x9e3779b9")
    lx = a.newlabel("nox")
    a(f"s_cmp_lg_u32 s{sW}, 0"); a(f"s_cbranch_scc1 {lx}")
    uni([(sI, 512), (sR, 16)], XID)
    a(f"v_mov_b32 v{t[13]}, s{sT0}")
    a(f"v_mov_b32 v{G+8}, s{sXt}"); a(f"v_mov_b32 v{G+9}, s{sXcc}"); a(f"v_not_b32 v{G+10}, v{G+8}"); a(f"v_mov_b32 v{G+11}, s{sXcc}")
    execm(1, 0)
    a(f"global_store_dwordx4 v{t[13]}, {vr(G+8,4)}, {sr(sWS)} sc1")
    execm(FULL)
    a.label(lx)
    a("s_waitcnt vmcnt(0)")
    a(f"v_lshlrev_b32 v{XRES}, 16, v{XRES+1}"); a(f"v_and_b32 v{XRES+1}, 0xffff0000, v{XRES+1}")
    a(f"v_lshlrev_b32 v{B2}, 16, v{B2+1}"); a(f"v_and_b32 v{B2+1}, 0xffff0000, v{B2+1}")
    a(f"v_lshlrev_b32 v{B1}, 16, v{B1+2}"); a(f"v_and_b32 v{B1+1}, 0xffff0000, v{B1+2}")
    a(f"v_lshlrev_b32 v{B1+2}, 16, v{B1+3}"); a(f"v_and_b32 v{B1+3}, 0xffff0000, v{B1+3}")
    stamp("pro")
    lds_wait1(FL_T + 0, 1)
    tr_read_std(WQ, A["TRS"], R0)
    a("s_waitcnt lgkmcnt(0)")
    lds_signal(FL_WQC)
    stamp("wq")

    a.label("L_layer")
    gemm8(WQ, XS_B)
    lq = a.newlabel("nogram")
    a(f"s_cmp_lg_u32 s{sS}, 0"); a(f"s_cbranch_scc1 {lq}")
    gl = [a.newlabel("g") for _ in range(4)]; gd = a.newlabel("gd")
    for k in range(1, 4):
        a(f"s_cmp_eq_u32 s{sW}, {k}"); a(f"s_cbranch_scc1 {gl[k]}")
    for k in range(4):
        a.label(gl[k])
        a(f"v_mfma_f32_16x16x32_bf16 {vr(ACC+8,4)}, {vr(XS_B+4*k,4)}, {vr(XS_B+4*k,4)}, 0")
        if k < 3: a(f"s_branch {gd}")
    a.label(gd)
    a.label(lq)
    lc = a.newlabel("nocq")
    a(f"s_cmp_lg_u32 s{sLay}, 0"); a(f"s_cbranch_scc1 {lc}")
    tag_into(G, ACC, sTA); tag_into(G+4, ACC+4, sTA)
    execm(MEQ8)
    a(f"global_store_dwordx4 v{A['CQs']}, {vr(G,4)}, {sr(sWS)} sc1")
    a(f"global_store_dwordx4 v{A['CQs']}, {vr(G+4,4)}, {sr(sWS)} offset:64 sc1")
    execm(FULL)
    a.label(lc)
    merge_tiles()
    tag_into(ACC, ACC, sTA)
    a(f"global_store_dwordx4 v{A['E1s']}, {vr(ACC,4)}, {sr(sL)} sc1")
    lq2 = a.newlabel("nost")
    a(f"s_cmp_lg_u32 s{sS}, 0"); a(f"s_cbranch_scc1 {lq2}")
    tag_into(ACC+8, ACC+8, sTA)
    execm(MC8, 0xFF)
    a(f"global_store_dwordx4 v{A['SQs']}, {vr(ACC+8,4)}, {sr(sL)} sc1")
    execm(FULL)
    a.label(lq2)
    stamp("Qp")
    lk = a.newlabel("nok")
    a(f"s_cmp_lg_u32 s{sLay}, 0"); a(f"s_cbranch_scc1 {lk}")
    uni([(sI, 512)], XID)
    a(f"v_and_b32 v{t[0]}, 31, v0"); a(f"v_lshlrev_b32 v{t[0]}, 4, v{t[0]}"); a(f"v_add_u32 v{t[0]}, s{sT0}, v{t[0]}")
    lxw = a.newlabel("xw"); a.label(lxw)
    a(f"global_load_dwordx4 {vr(G,4)}, v{t[0]}, {sr(sWS)} sc1")
    a("s_waitcnt vmcnt(0)")
    a(f"v_not_b32 v{G+2}, v{G+2}"); a(f"v_xor_b32 v{G}, s{sXt}, v{G}"); a(f"v_xor_b32 v{G+2}, s{sXt}, v{G+2}")
    a(f"v_xor_b32 v{G+3}, v{G+3}, v{G+1}"); a(f"v_or3_b32 v{G}, v{G}, v{G+2}, v{G+3}")
    a(f"v_cmp_ne_u32 vcc, 0, v{G}")
    retry(lxw)
    a(f"v_cmp_ne_u32 vcc, s{sXcc}, v{G+1}")
    a(f"s_cmp_eq_u64 vcc, 0"); a(f"s_cselect_b32 s{sMode}, 1, 0")
    lxs = a.newlabel("noxs")
    a(f"s_cmp_lg_u32 s{sW}, 3"); a(f"s_cbranch_scc1 {lxs}")
    a(f"v_mov_b32 v{G}, -1")
    a(f"v_add_u32 v{t[0]}, {XSA:#x}, v{A['XSs']}"); a(f"v_add_u32 v{t[1]}, {XSB:#x}, v{A['XSs']}"); a(f"v_add_u32 v{t[2]}, {LSTRIDE+XSA:#x}, v{A['XSs']}")
    execm(0xFF)
    for k in range(3): store_mode(f"global_store_dword v{t[k]}, v{G}, {sr(sWS)}")
    execm(FULL)
    a("s_waitcnt vmcnt(0)")
    a.label(lxs)
    lds_wait1(FL_T + 4, 1)
    a(f"v_and_b32 v{t[0]}, 15, v0"); a(f"v_lshrrev_b32 v{t[1]}, 4, v0"); a(f"v_and_b32 v{t[2]}, 3, v0")
    a(f"s_lshl_b32 s{sT0}, s{sW}, 13"); a(f"s_add_u32 s{sT0}, s{sT0}, {R1}")
    a(f"v_lshlrev_b32 v{t[0]}, 8, v{t[0]}"); a(f"v_lshl_add_u32 v{t[0]}, v{t[1]}, 4, v{t[0]}"); a(f"v_add_u32 v{t[0]}, s{sT0}, v{t[0]}")
    for ks in range(4):
        a(f"v_xor_b32 v{t[1]}, {ks}, v{t[2]}"); a(f"v_lshl_add_u32 v{t[8+ks]}, v{t[1]}, 6, v{t[0]}")
    for kt in range(2):
        for ks in range(4):
            a(f"ds_read_b128 {vr(KK+(kt*4+ks)*4,4)}, v{t[8+ks]} offset:{kt*4096}")
    a("s_waitcnt lgkmcnt(0)")
    lds_signal(FL_KC)
    a.label(lk)
    lv = a.newlabel("nov")
    a(f"ds_read_b32 v{t[3]}, v{A['FLG']} offset:{FL_T+8}"); a("s_waitcnt lgkmcnt(0)")
    a(f"v_readfirstlane_b32 s{sVrd}, v{t[3]}")
    a(f"s_cmp_eq_u32 s{sVrd}, 0"); a(f"s_cbranch_scc1 {lv}")
    tr_read_v()
    a.label(lv)
    if P["D1"]: a(f"s_sleep {P['D1']}")
    stamp("E1go")
    ST = G2 + 32
    le1 = a.newlabel("e1"); a.label(le1)
    a(f"global_load_dwordx4 {vr(ST,4)}, v{A['SQl']}, {sr(sL)} sc1")
    for j in range(8): a(f"global_load_dwordx4 {vr(G+4*j,4)}, v{A['E1l']}, {sr(sL)} offset:{j*1024-4096} sc1")
    chk = t[0]; sv = t[1]; tmp = t[2]; rq = t[8]; mq = t[10]
    a("s_waitcnt vmcnt(8)")
    tag_check(chk, ST, sTA, True)
    a(f"v_cndmask_b32 v{sv}, v{ST}, v{ST+1}, {sr(sMQ[0])}"); a(f"v_cndmask_b32 v{sv}, v{sv}, v{ST+2}, {sr(sMQ[1])}")
    a(f"v_cndmask_b32 v{sv}, v{sv}, v{ST+3}, {sr(sMQ[2])}")
    dpp("v_add_f32", sv, sv, sv, "quad_perm:[1,0,3,2]"); dpp("v_add_f32", sv, sv, sv, "quad_perm:[2,3,0,1]")
    dpp("v_add_f32", sv, sv, sv, "row_half_mirror")
    red_x16(sv, tmp); red_x32(sv, tmp)
    a(f"v_mov_b32_dpp v{tmp}, v{sv} row_ror:8 row_mask:0xf bank_mask:0xf")
    a(f"v_cndmask_b32 v{mq}, v{tmp}, v{sv}, {sr(sH3)}")
    a(f"v_cndmask_b32 v{rq}, v{sv}, v{tmp}, {sr(sH3)}")
    a(f"v_mul_f32 v{mq}, s{sInvN}, v{mq}"); a(f"v_mul_f32 v{rq}, s{sInvN}, v{rq}")
    a(f"v_fma_f32 v{rq}, -v{mq}, v{mq}, v{rq}"); a(f"v_max_f32 v{rq}, 0, v{rq}"); a(f"v_add_f32 v{rq}, s{sEps}, v{rq}")
    a(f"v_rsq_f32 v{rq}, v{rq}")
    for j in range(8):
        a(f"s_waitcnt vmcnt({7-j})")
        tag_check(chk, G+4*j, sTA, False)
        if j > 0:
            a(f"v_pk_add_f32 {vr(G,2)}, {vr(G,2)}, {vr(G+4*j,2)}"); a(f"v_pk_add_f32 {vr(G+2,2)}, {vr(G+2,2)}, {vr(G+4*j+2,2)}")
    tag_finish(chk)
    retry(le1)
    lcq = a.newlabel("nocl")
    a(f"s_cmp_lg_u32 s{sLay}, 0"); a(f"s_cbranch_scc1 {lcq}")
    lc1 = a.newlabel("cq"); a.label(lc1)
    for j in range(8): a(f"global_load_dwordx4 {vr(G2+4*j,4)}, v{A['CQl']}, {sr(sWS)} offset:{j*1024-4096} sc1")
    for j in range(8):
        a(f"s_waitcnt vmcnt({7-j})")
        tag_check(chk, G2+4*j, sTA, j == 0)
        if j == 1:
            a(f"v_pk_add_f32 {vr(CQ,2)}, {vr(G2,2)}, {vr(G2+4,2)}"); a(f"v_pk_add_f32 {vr(CQ+2,2)}, {vr(G2+2,2)}, {vr(G2+6,2)}")
        if j > 1:
            a(f"v_pk_add_f32 {vr(CQ,2)}, {vr(CQ,2)}, {vr(G2+4*j,2)}"); a(f"v_pk_add_f32 {vr(CQ+2,2)}, {vr(CQ+2,2)}, {vr(G2+4*j+2,2)}")
    tag_finish(chk)
    retry(lc1)
    a.label(lcq)
    for j in range(4): a(f"v_fma_f32 v{G+j}, -v{mq}, v{CQ+j}, v{G+j}")
    for j in range(4): a(f"v_mul_f32 v{G+j}, v{rq}, v{G+j}")
    a(f"v_cvt_pk_bf16_f32 v{G}, v{G}, v{G+1}"); a(f"v_cvt_pk_bf16_f32 v{G+1}, v{G+2}, v{G+3}")
    a(f"ds_write_b64 v{A['QXW']}, {vr(G,2)}")
    lds_signal(FL_Q)
    stamp("E1ok")
    def rd_xb(region):
        def f():
            for ks in range(4): a(f"ds_read_b128 {vr(XB+4*ks,4)}, v{A['XRD']} offset:{region-SC+ks*576}")
        return f
    lds_wait4(FL_Q, rd_xb(QX))
    gemm8(KK, XB)
    mx = t[0]
    a(f"v_max3_f32 v{mx}, v{ACC}, v{ACC+1}, v{ACC+2}"); a(f"v_max3_f32 v{mx}, v{mx}, v{ACC+3}, v{ACC+4}")
    a(f"v_max3_f32 v{mx}, v{mx}, v{ACC+5}, v{ACC+6}"); a(f"v_max_f32 v{mx}, v{mx}, v{ACC+7}")
    red_x16(mx, tmp, "v_max_f32"); red_x32(mx, tmp, "v_max_f32")
    MW = G + 8
    a(f"v_mul_f32 v{MW}, s{sKap}, v{mx}")
    for j in range(8): a(f"v_fma_f32 v{G+j}, v{ACC+j}, s{sKap}, -v{MW}")
    for j in range(8): a(f"v_exp_f32 v{G+j}, v{G+j}")
    PB = G + 12
    for j in range(4): a(f"v_cvt_pk_bf16_f32 v{PB+j}, v{G+2*j}, v{G+2*j+1}")
    lv2 = a.newlabel("havev")
    a(f"s_cmp_lg_u32 s{sVrd}, 0"); a(f"s_cbranch_scc1 {lv2}")
    lds_wait1(FL_T + 8, 1)
    tr_read_v()
    a.label(lv2)
    a("s_waitcnt lgkmcnt(0)")
    stamp("SM")
    a(f"v_mfma_f32_16x16x32_bf16 {vr(ACC+32,4)}, {vr(ONES,4)}, {vr(PB,4)}, 0")
    for dt in range(8):
        a(f"v_mfma_f32_16x16x32_bf16 {vr(ACC+4*dt,4)}, {vr(TT+4*dt,4)}, {vr(PB,4)}, 0")
    a(f"v_mov_b32 v{MW+1}, v{ACC+32}")
    execm(0xFF, 0)
    a(f"ds_write_b64 v{A['MLWW']}, {vr(MW,2)}")
    execm(MC8)
    for dt in range(8): a(f"ds_write_b128 v{A['OWW']}, {vr(ACC+4*dt,4)} offset:{dt*64}")
    execm(FULL)
    lds_signal(FL_OW)
    def rd_ow():
        a(f"ds_read_b128 {vr(G2,4)}, v{A['MLWR']}"); a(f"ds_read_b128 {vr(G2+4,4)}, v{A['MLWR']} offset:16")
        for w2 in range(4): a(f"ds_read_b128 {vr(G+4*w2,4)}, v{A['OWR']} offset:{w2*4224}")
    lds_wait4(FL_OW, rd_ow)
    MM = t[1]
    a(f"v_max3_f32 v{MM}, v{G2}, v{G2+2}, v{G2+4}"); a(f"v_max_f32 v{MM}, v{MM}, v{G2+6}")
    for w2 in range(4): a(f"v_sub_f32 v{G2+2*w2}, v{G2+2*w2}, v{MM}")
    for w2 in range(4): a(f"v_exp_f32 v{G2+2*w2}, v{G2+2*w2}")
    for h2 in range(2):
        a(f"v_pk_mul_f32 {vr(G+2*h2,2)}, {vr(G+2*h2,2)}, {vr(G2,2)} op_sel_hi:[1,0]")
    for w2 in range(1, 4):
        for h2 in range(2):
            a(f"v_pk_fma_f32 {vr(G+2*h2,2)}, {vr(G+4*w2+2*h2,2)}, {vr(G2+2*w2,2)}, {vr(G+2*h2,2)} op_sel_hi:[1,0,1]")
    a(f"v_cvt_pk_bf16_f32 v{G}, v{G}, v{G+1}"); a(f"v_cvt_pk_bf16_f32 v{G+1}, v{G+2}, v{G+3}")
    a(f"v_min_u32 v{G}, -2, v{G}"); a(f"v_min_u32 v{G+1}, -2, v{G+1}")
    a(f"global_store_dwordx2 v{A['E2s']}, {vr(G,2)}, {sr(sL)} sc1")
    a(f"v_mul_f32 v{MM+1}, v{G2}, v{G2+1}")
    for w2 in range(1, 4): a(f"v_fma_f32 v{MM+1}, v{G2+2*w2}, v{G2+2*w2+1}, v{MM+1}")
    a(f"v_min_u32 v{MM}, -2, v{MM}"); a(f"v_min_u32 v{MM+1}, -2, v{MM+1}")
    execm(1)
    a(f"global_store_dwordx2 v{A['MLs']}, {vr(MM,2)}, {sr(sL)} sc1")
    execm(FULL)
    stamp("E2st")
    lds_wait1(FL_T + 12, 1)
    a(f"v_add_u32 v{t[0]}, {R3}, v{A['TRS']}")
    tr_read_std(TT, t[0], 0)
    if P["D2"]: a(f"s_sleep {P['D2']}")
    stamp("E2go")
    le2 = a.newlabel("e2"); a.label(le2)
    for j in range(4): a(f"global_load_dwordx2 {vr(G2+2*j,2)}, v{A['MLl']}, {sr(sL)} offset:{(j>>1)*1024+(j&1)*512} sc1")
    for j in range(4): a(f"global_load_dwordx4 {vr(G+4*j,4)}, v{A['E2l']}, {sr(sL)} offset:{j*1024} sc1")
    a("s_waitcnt vmcnt(4)")
    a(f"v_max3_u32 v{chk}, v{G2}, v{G2+1}, v{G2+2}"); a(f"v_max3_u32 v{chk}, v{chk}, v{G2+3}, v{G2+4}")
    a(f"v_max3_u32 v{chk}, v{chk}, v{G2+5}, v{G2+6}"); a(f"v_max_u32 v{chk}, v{chk}, v{G2+7}")
    m0_, m1_, l0_, l1_ = t[8], t[9], t[10], t[11]
    a(f"v_max_f32 v{m0_}, v{G2}, v{G2+2}"); a(f"v_max_f32 v{m1_}, v{G2+4}, v{G2+6}")
    red_x16(m0_, t[12], "v_max_f32"); red_x16(m1_, t[13], "v_max_f32")
    red_x32(m0_, t[12], "v_max_f32"); red_x32(m1_, t[13], "v_max_f32")
    for j in range(4): a(f"v_sub_f32 v{G2+2*j}, v{G2+2*j}, v{m0_ if j < 2 else m1_}")
    for j in range(4): a(f"v_exp_f32 v{G2+2*j}, v{G2+2*j}")
    for j in range(4): a(f"v_cvt_pk_bf16_f32 v{G2+2*j}, v{G2+2*j}, v{G2+2*j}")
    AJ = G2 + 8
    for j in range(4):
        for k in range(4): a(f"v_and_b32 v{AJ+4*j+k}, v{(SEL1 if j < 2 else SEL2)+k}, v{G2+2*j}")
    for j in range(4): a(f"v_and_b32 v{G2+2*j}, 0xffff0000, v{G2+2*j}")
    a(f"v_mul_f32 v{l0_}, v{G2}, v{G2+1}"); a(f"v_mul_f32 v{l1_}, v{G2+4}, v{G2+5}")
    a(f"v_fma_f32 v{l0_}, v{G2+2}, v{G2+3}, v{l0_}"); a(f"v_fma_f32 v{l1_}, v{G2+6}, v{G2+7}, v{l1_}")
    red_x16(l0_, t[12]); red_x16(l1_, t[13]); red_x32(l0_, t[12]); red_x32(l1_, t[13])
    a(f"v_cndmask_b32 v{l0_}, v{l0_}, v{l1_}, {sr(sH5)}")
    a(f"v_rcp_f32 v{l0_}, v{l0_}")
    for j in range(4):
        a(f"s_waitcnt vmcnt({3-j})")
        c_in = "0" if j == 0 else vr(DD, 4)
        a(f"v_mfma_f32_16x16x32_bf16 {vr(DD,4)}, {vr(AJ+4*j,4)}, {vr(G+4*j,4)}, {c_in}")
        a(f"v_max3_u32 v{chk}, v{chk}, v{G+4*j}, v{G+4*j+1}"); a(f"v_max3_u32 v{chk}, v{chk}, v{G+4*j+2}, v{G+4*j+3}")
    a(f"v_cmp_eq_u32 vcc, -1, v{chk}")
    retry(le2)
    for j in range(4): a(f"v_mul_f32 v{G+j}, v{l0_}, v{DD+j}")
    a(f"v_cvt_pk_bf16_f32 v{G}, v{G}, v{G+1}"); a(f"v_cvt_pk_bf16_f32 v{G+1}, v{G+2}, v{G+3}")
    a(f"ds_write_b64 v{A['OXW']}, {vr(G,2)}")
    lds_signal(FL_O)
    stamp("E2ok")
    lds_wait4(FL_O, rd_xb(OX))
    gemm8(TT, XB)
    merge_tiles()
    tag_into(ACC, ACC, sTA)
    store_mode(f"global_store_dwordx4 v{A['E3s']}, {vr(ACC,4)}, {sr(sWS)}")
    stamp("E3st")
    def reduce_stage(tg, nprod, last_hop):
        lr = a.newlabel("red"); a.label(lr)
        for j in range(4):
            if j == 3 and nprod == 28:
                for k in range(4): a(f"v_mov_b32 v{G+12+k}, s{tg+k}")
                execm(FULL, 0)
            a(f"global_load_dwordx4 {vr(G+4*j,4)}, v{A['E3l']}, {sr(sWS)} offset:{j*1024} sc1")
        if nprod == 28: execm(FULL)
        for j in range(4):
            a(f"s_waitcnt vmcnt({3-j})")
            tag_check(chk, G+4*j, tg, j == 0)
            if j > 0:
                a(f"v_pk_add_f32 {vr(G,2)}, {vr(G,2)}, {vr(G+4*j,2)}"); a(f"v_pk_add_f32 {vr(G+2,2)}, {vr(G+2,2)}, {vr(G+4*j+2,2)}")
        tag_finish(chk)
        retry(lr)
        a(f"v_permlane32_swap_b32 v{G}, v{G+2}"); a(f"v_permlane32_swap_b32 v{G+1}, v{G+3}")
        a(f"v_pk_add_f32 {vr(G,2)}, {vr(G,2)}, {vr(G+2,2)}")
        red_x16(G, G+2); red_x16(G+1, G+3)
        dpp("v_add_f32", G, G, G, "row_ror:8"); dpp("v_add_f32", G+1, G+1, G+1, "row_ror:8")
    def xs_poll(off):
        lp = a.newlabel("xs")
        a(f"v_add_u32 v{t[0]}, {off:#x}, v{A['XSl']}")
        execm(MC8)
        a.label(lp)
        for ks in range(4): a(f"global_load_dwordx4 {vr(XS_B+4*ks,4)}, v{t[0]}, {sr(sL)} offset:{ks*512} sc1")
        for ks in range(4):
            a(f"s_waitcnt vmcnt({3-ks})")
            if ks == 0: a(f"v_max3_u32 v{t[1]}, v{XS_B}, v{XS_B+1}, v{XS_B+2}"); a(f"v_max_u32 v{t[1]}, v{t[1]}, v{XS_B+3}")
            else:
                a(f"v_max3_u32 v{t[1]}, v{t[1]}, v{XS_B+4*ks}, v{XS_B+4*ks+1}"); a(f"v_max3_u32 v{t[1]}, v{t[1]}, v{XS_B+4*ks+2}, v{XS_B+4*ks+3}")
        a(f"v_cmp_eq_u32 vcc, -1, v{t[1]}")
        retry(lp)
        execm(FULL)
    def finish_x(off):
        a(f"v_cvt_pk_bf16_f32 v{G}, v{G}, v{G+1}")
        a(f"v_min_u32 v{G}, -2, v{G}")
        a(f"v_add_u32 v{t[0]}, {off:#x}, v{A['XSs']}")
        execm(0xFF)
        store_mode(f"global_store_dword v{t[0]}, v{G}, {sr(sL)}")
        execm(FULL)
        a(f"v_lshlrev_b32 v{XRES}, 16, v{G}"); a(f"v_and_b32 v{XRES+1}, 0xffff0000, v{G}")
    lw1 = a.newlabel("now1")
    a(f"s_cmp_ge_u32 s{sR}, 28"); a(f"s_cbranch_scc1 {lw1}")
    lds_wait1(FL_T + 16, 1)
    tr_read_std(TT, A["TRS"], R0)
    a.label(lw1)
    a(f"s_lshl_b32 s{sT2}, s{sLay}, 1"); a(f"s_add_u32 s{sT2}, s{sT2}, 1")
    lnr = a.newlabel("nored"); ldr = a.newlabel("reddone")
    a(f"s_cmp_lg_u32 s{sW}, 3"); a(f"s_cbranch_scc1 {lnr}")
    reduce_stage(sTA, 32, False)
    a(f"v_pk_add_f32 {vr(G,2)}, {vr(G,2)}, {vr(XRES,2)}")
    finish_x(XSA)
    a(f"v_mov_b32 v{t[7]}, s{sT2}"); a(f"ds_write_b32 v{A['FLG']}, v{t[7]} offset:{FL_RED}")
    a(f"s_branch {ldr}")
    a.label(lnr)
    lds_wait1(FL_RED, f"s{sT2}")
    a.label(ldr)
    stamp("red1")
    xs_poll(XSA)
    a("s_waitcnt lgkmcnt(0)")
    stamp("xs1")
    lf_no = a.newlabel("nof"); lf_end = a.newlabel("fend")
    a(f"s_cmp_ge_u32 s{sR}, 28"); a(f"s_cbranch_scc1 {lf_no}")
    gemm8(TT, XS_B)
    lc = a.newlabel("noc1")
    a(f"s_cmp_lg_u32 s{sLay}, 0"); a(f"s_cbranch_scc1 {lc}")
    tag_into(G, ACC, sTB); tag_into(G+4, ACC+4, sTB)
    execm(MEQ8)
    a(f"global_store_dwordx4 v{A['C1s']}, {vr(G,4)}, {sr(sWS)} sc1")
    a(f"global_store_dwordx4 v{A['C1s']}, {vr(G+4,4)}, {sr(sWS)} offset:64 sc1")
    execm(FULL)
    a.label(lc)
    for j in range(4): a(f"v_cvt_pk_bf16_f32 v{G+8+j}, v{ACC+2*j}, v{ACC+2*j+1}")
    for j in range(4): a(f"v_min_u32 v{G+8+j}, -2, v{G+8+j}")
    execm(MC8)
    a(f"global_store_dwordx4 v{A['E5s']}, {vr(G+8,4)}, {sr(sL)} sc1")
    execm(FULL)
    stamp("E5st")
    lds_wait1(FL_T + 20, 1)
    tr_read_std(TT, A["TRS"], R1)
    for k in range(4):
        a(f"v_and_b32 v{ACC+8+k}, v{SEL1+k}, v{ONES}"); a(f"v_and_b32 v{ACC+12+k}, v{SEL2+k}, v{ONES}")
    if P["D5"]: a(f"s_sleep {P['D5']}")
    stamp("E5go")
    le5 = a.newlabel("e5"); a.label(le5)
    SA = G2 + 28; SB = G + 16
    a(f"global_load_dwordx4 {vr(SA,4)}, v{A['S1a']}, {sr(sL)} sc1")
    a(f"global_load_dwordx4 {vr(SB,4)}, v{A['S1b']}, {sr(sL)} sc1")
    for j in range(4): a(f"global_load_dwordx4 {vr(G+4*j,4)}, v{A['E5l']}, {sr(sL)} offset:{(j&1)*256+(j>>1)*2048} sc1")
    a("s_waitcnt vmcnt(4)")
    tag_check(chk, SA, sTB, True); tag_check(chk, SB, sTB, False)
    s2_, s1_ = t[8], t[10]
    a(f"v_cndmask_b32 v{s2_}, v{SA}, v{SA+1}, {sr(sM1[0])}"); a(f"v_cndmask_b32 v{s2_}, v{s2_}, v{SA+2}, {sr(sM1[1])}")
    a(f"v_cndmask_b32 v{s2_}, v{s2_}, v{SA+3}, {sr(sM1[2])}")
    dpp("v_add_f32", s1_, SB, SB, "row_ror:8"); dpp("v_add_f32", s2_, s2_, s2_, "row_ror:8")
    red_x16(s1_, t[12]); red_x16(s2_, t[13]); red_x32(s1_, t[12]); red_x32(s2_, t[13])
    a(f"v_mul_f32 v{s1_}, s{sInvN}, v{s1_}"); a(f"v_mul_f32 v{s2_}, s{sInvN}, v{s2_}")
    a(f"v_fma_f32 v{s2_}, -v{s1_}, v{s1_}, v{s2_}"); a(f"v_max_f32 v{s2_}, 0, v{s2_}")
    a(f"v_add_f32 v{t[12]}, s{sEps}, v{s2_}"); a(f"v_rsq_f32 v{t[12]}, v{t[12]}")
    a(f"v_mul_f32 v{s2_}, v{s2_}, v{t[12]}"); a(f"v_fma_f32 v{s2_}, v{s2_}, v{t[12]}, s{sEps}")
    a(f"v_rsq_f32 v{s2_}, v{s2_}"); a(f"v_mul_f32 v{s2_}, v{s2_}, v{t[12]}")
    a(f"v_and_b32 v{chk}, 0xff, v{chk}"); a(f"v_cmp_ne_u32 vcc, 0, v{chk}"); a(f"v_cndmask_b32 v{chk}, 0, -1, vcc")
    for j in range(4):
        a(f"s_waitcnt vmcnt({3-j})")
        c_in = "0" if j == 0 else vr(DD, 4)
        a(f"v_mfma_f32_16x16x32_bf16 {vr(DD,4)}, {vr(ACC+8+4*(j&1),4)}, {vr(G+4*j,4)}, {c_in}")
        a(f"v_max3_u32 v{chk}, v{chk}, v{G+4*j}, v{G+4*j+1}"); a(f"v_max3_u32 v{chk}, v{chk}, v{G+4*j+2}, v{G+4*j+3}")
    a(f"v_cmp_eq_u32 vcc, -1, v{chk}")
    retry(le5)
    lcq = a.newlabel("noc1l")
    a(f"s_cmp_lg_u32 s{sLay}, 0"); a(f"s_cbranch_scc1 {lcq}")
    a(f"v_bfe_u32 v{t[11]}, v0, 4, 1"); a(f"v_lshrrev_b32 v{t[12]}, 5, v0"); a(f"v_bfe_u32 v{t[13]}, v0, 3, 1")
    addr("C1l", [(t[11], 64), (t[12], 32), (t[13], 16)], [(sR, 4096), (sW, 1024)], EC1)
    lc1 = a.newlabel("c1"); a.label(lc1)
    for j in range(8): a(f"global_load_dwordx4 {vr(G2+4*j,4)}, v{A['C1l']}, {sr(sWS)} offset:{j*128} sc1")
    for j in range(8):
        a(f"s_waitcnt vmcnt({7-j})")
        tag_check(chk, G2+4*j, sTB, j == 0)
        if j == 1:
            a(f"v_pk_add_f32 {vr(C1,2)}, {vr(G2,2)}, {vr(G2+4,2)}"); a(f"v_pk_add_f32 {vr(C1+2,2)}, {vr(G2+2,2)}, {vr(G2+6,2)}")
        if j > 1:
            a(f"v_pk_add_f32 {vr(C1,2)}, {vr(C1,2)}, {vr(G2+4*j,2)}"); a(f"v_pk_add_f32 {vr(C1+2,2)}, {vr(C1+2,2)}, {vr(G2+4*j+2,2)}")
    tag_finish(chk)
    retry(lc1)
    a.label(lcq)
    Z = G; U = G + 4
    for j in range(4): a(f"v_fma_f32 v{Z+j}, -v{s1_}, v{C1+j}, v{DD+j}")
    for j in range(4): a(f"v_fma_f32 v{Z+j}, v{Z+j}, v{s2_}, v{B1+j}")
    a(f"v_mov_b32 v{t[12]}, s{sG1}")
    for j in range(4): a(f"v_mul_f32 v{U+j}, v{Z+j}, v{Z+j}")
    for j in range(4): a(f"v_fma_f32 v{U+j}, v{U+j}, s{sG2}, v{t[12]}")
    for j in range(4): a(f"v_mul_f32 v{U+j}, v{U+j}, v{Z+j}")
    for j in range(4): a(f"v_exp_f32 v{U+j}, v{U+j}")
    for j in range(4): a(f"v_add_f32 v{U+j}, 1.0, v{U+j}")
    for j in range(4): a(f"v_rcp_f32 v{U+j}, v{U+j}")
    for j in range(4): a(f"v_mul_f32 v{Z+j}, v{Z+j}, v{U+j}")
    a(f"v_cvt_pk_bf16_f32 v{G}, v{G}, v{G+1}"); a(f"v_cvt_pk_bf16_f32 v{G+1}, v{G+2}, v{G+3}")
    a(f"ds_write_b64 v{A['HXW']}, {vr(G,2)}")
    lds_signal(FL_H)
    stamp("E5ok")
    lds_wait4(FL_H, rd_xb(HX))
    gemm8(TT, XB)
    merge_tiles()
    tag_into(ACC, ACC, sTB)
    store_mode(f"global_store_dwordx4 v{A['E3s']}, {vr(ACC,4)}, {sr(sWS)}")
    a(f"s_branch {lf_end}")
    a.label(lf_no)
    a(f"s_cmp_lg_u32 s{sR}, 28"); a(f"s_cbranch_scc1 {lf_end}")
    a(f"s_cmp_lg_u32 s{sW}, 0"); a(f"s_cbranch_scc1 {lf_end}")
    a(f"s_mul_i32 s{sT0}, s{sI}, 1536"); a(f"s_sub_u32 s{sT0}, {ST1:#x}, s{sT0}"); a(f"v_add_u32 v{t[0]}, s{sT0}, v{A['XSl']}")
    for ks in range(4):
        c_in = "0" if ks == 0 else vr(ACC, 4)
        a(f"v_mfma_f32_16x16x32_bf16 {vr(ACC,4)}, {vr(XS_B+4*ks,4)}, {vr(XS_B+4*ks,4)}, {c_in}")
    tag_into(ACC, ACC, sTB)
    execm(MC8, 0xFF)
    a(f"global_store_dwordx4 v{t[0]}, {vr(ACC,4)}, {sr(sL)} sc1")
    execm(FULL)
    a.label(lf_end)
    stamp("E6st")
    a(f"s_lshl_b32 s{sT2}, s{sLay}, 1"); a(f"s_add_u32 s{sT2}, s{sT2}, 2")
    lnr = a.newlabel("nored"); ldr = a.newlabel("reddone")
    a(f"s_cmp_lg_u32 s{sW}, 3"); a(f"s_cbranch_scc1 {lnr}")
    out_addr()
    reduce_stage(sTB, 28, True)
    a(f"v_pk_add_f32 {vr(G,2)}, {vr(G,2)}, {vr(B2,2)}")
    a(f"v_pk_add_f32 {vr(G,2)}, {vr(G,2)}, {vr(XRES,2)}")
    a(f"s_cmp_lg_u32 s{sLay}, 0"); a("s_cbranch_scc1 L_final")
    finish_x(XSB)
    a(f"v_mov_b32 v{t[7]}, s{sT2}"); a(f"ds_write_b32 v{A['FLG']}, v{t[7]} offset:{FL_RED}")
    a(f"s_branch {ldr}")
    a.label(lnr)
    a(f"s_cmp_lg_u32 s{sLay}, 0"); a("s_cbranch_scc1 L_fin2")
    lds_wait1(FL_RED, f"s{sT2}")
    a.label(ldr)
    stamp("red2")
    xs_poll(XSB)
    stamp("xs2")
    a(f"s_mov_b32 s{sLay}, 1"); a(f"s_mov_b32 s{sSeq}, 2")
    a(f"s_add_u32 s{sL}, s{sL}, {LSTRIDE:#x}"); a(f"s_addc_u32 s{sL+1}, s{sL+1}, 0")
    set_tags()
    a("s_branch L_layer")
    a.label("L_final")
    a(f"v_cvt_pk_bf16_f32 v{G}, v{G}, v{G+1}")
    execm(0xFF)
    a(f"global_store_dword v{A['OUT']}, v{G}, {sr(sOUT)}")
    execm(FULL)
    lne = a.newlabel("noep")
    a(f"s_cmp_lg_u32 s2, 0"); a(f"s_cbranch_scc1 {lne}")
    a(f"s_add_u32 s{sT0}, s{sEP}, 1"); a(f"v_mov_b32 v{t[0]}, s{sT0}"); a(f"v_mov_b32 v{t[1]}, {EPOCH:#x}")
    execm(1, 0)
    a(f"global_store_dword v{t[1]}, v{t[0]}, {sr(sWS)}")
    execm(FULL)
    a.label(lne)
    a.label("L_fin2")
    nst = stamp_idx[0]
    stamp("end")
    a("s_branch L_dump")

    a.label("L_loader")
    fl = " " + P["FLAV"] if P["FLAV"] else ""
    a(f"v_lshrrev_b32 v{t[0]}, 4, v0"); a(f"v_and_b32 v{t[1]}, 15, v0")
    a(f"v_lshlrev_b32 v{t[2]}, 2, v{t[0]}"); a(f"v_xor_b32 v{t[1]}, v{t[1]}, v{t[2]}"); a(f"v_lshlrev_b32 v{t[1]}, 4, v{t[1]}")
    offs = {}
    for k, stride in enumerate((8192, 256, 2048, 7168)):
        offs[stride] = t[8+k]
        a(f"s_mov_b32 s{sT0}, {stride}"); a(f"v_mad_u32_u24 v{t[8+k]}, v{t[0]}, s{sT0}, v{t[1]}")
    a(f"v_mov_b32 v{t[7]}, 1")
    a("s_waitcnt lgkmcnt(0)")
    def addbase(sb, terms, const):
        uni(terms, const)
        a(f"s_add_u32 s{sb}, s{sb}, s{sT0}"); a(f"s_addc_u32 s{sb+1}, s{sb+1}, 0")
    addbase(sWQ, [(sI, 1048576), (sR, 256)], 0)
    D = P["DEPTH"]
    tiles = [(sWQ, 8192, R0), (sK, 256, R1), (sVv, 256, R2), (sWO, 2048, R3), (sW1, 7168, R0), (sW2, 2048, R1)]
    cnt = [0]
    done_sig = [0]
    def signal_ready(ncomplete):
        while done_sig[0] < 6 and ncomplete >= 32 * (done_sig[0] + 1):
            a(f"ds_write_b32 v{A['FLG']}, v{t[7]} offset:{FL_T + 4*done_sig[0]}")
            done_sig[0] += 1
    def issue_tile(ti):
        sb, stride, region = tiles[ti]
        for j in range(32):
            if cnt[0] >= D:
                a(f"s_waitcnt vmcnt({D-1})")
                signal_ready(cnt[0] - D + 1)
            a(f"s_mov_b32 m0, {region + j*1024}")
            a(f"global_load_lds_dwordx4 v{offs[stride]}, {sr(sb)}{fl}")
            if j < 31:
                a(f"s_add_u32 s{sb}, s{sb}, {4*stride}"); a(f"s_addc_u32 s{sb+1}, s{sb+1}, 0")
            cnt[0] += 1
            if cnt[0] == min(D, 16):
                addbase(sK, [(sI, 4194304), (sG, 1048576), (sS, 32768)], 786432)
                addbase(sVv, [(sI, 4194304), (sG, 1048576), (sS, 32768)], 786432)
                addbase(sWO, [(sR, 262144), (sI, 256)], 0)
                addbase(sW1, [(sI, 917504), (sR, 256)], 0)
                addbase(sW2, [(sR, 262144), (sI, 256)], 0)
                a(f"s_mov_b32 s{sSeq}, 1")
                a("s_barrier")
    for ti in range(4): issue_tile(ti)
    a(f"s_cmp_ge_u32 s{sR}, 28"); a("s_cbranch_scc1 L_ldshort")
    save = (cnt[0], done_sig[0])
    lds_wait4(FL_WQC)
    issue_tile(4)
    lds_wait4(FL_KC)
    issue_tile(5)
    def drain(ntiles):
        while done_sig[0] < ntiles:
            rem = cnt[0] - 32 * (done_sig[0] + 1)
            a(f"s_waitcnt vmcnt({rem})")
            signal_ready(32 * (done_sig[0] + 1))
    drain(6)
    a("s_branch L_lddone")
    a.label("L_ldshort")
    cnt[0], done_sig[0] = save
    drain(4)
    a.label("L_lddone")
    if P["TIMING"]:
        a(f"s_memrealtime {sr(sTM)}"); a("s_waitcnt lgkmcnt(0)"); a(f"v_writelane_b32 v{vTS}, s{sTM}, 1")
    a.label("L_dump")
    if P["TIMING"]:
        a(f"s_mul_i32 s{sT0}, s2, 5"); a(f"s_add_u32 s{sT0}, s{sT0}, s{sW}"); a(f"s_lshl_b32 s{sT0}, s{sT0}, 8")
        a(f"s_add_u32 s{sT0}, s{sT0}, {TSOFF:#x}")
        a(f"v_lshlrev_b32 v{t[0]}, 2, v0"); a(f"v_add_u32 v{t[0]}, s{sT0}, v{t[0]}")
        a(f"global_store_dword v{t[0]}, v{vTS}, {sr(sWS)}")
    a.label("L_end")
    a("s_endpgm")
    a.raw(f""".section .rodata,"a"
.p2align 6
.amdhsa_kernel {KN}
  .amdhsa_next_free_vgpr 256
  .amdhsa_next_free_sgpr 102
  .amdhsa_accum_offset 256
  .amdhsa_group_segment_fixed_size 0
  .amdhsa_kernarg_size 104
  .amdhsa_user_sgpr_count 2
  .amdhsa_user_sgpr_kernarg_segment_ptr 1
  .amdhsa_system_sgpr_workgroup_id_x 1
.end_amdhsa_kernel""")
    return a.text(), stamp_names, V.next, S.next, a.nops

if __name__ == "__main__":
    out = sys.argv[1]
    P = dict(DEFAULTS)
    for kv in sys.argv[2:]:
        k, val = kv.split("=")
        P[k] = val if k == "FLAV" else int(val)
    txt, names, nv, ns, nops = generate(P)
    hdr = open("interleave_layers__sliding_block_cached__mixer_channel_mlp__decode.s.ref").read().split("; @launch")[0]
    open(out, "w").write(hdr + txt)
    print("vgprs", nv, "sgprs", ns, "nops", nops, "lines", txt.count("\n"), "stamps", names)
```

```python
import re

TRANS = ("v_exp_f32", "v_log_f32", "v_rcp_f32", "v_rsq_f32", "v_sqrt_f32", "v_sin_f32", "v_cos_f32")

def regs_of(tok):
    tok = tok.strip()
    tok = re.sub(r"^-|^abs\(|\)$|^\|", "", tok).strip("|")
    m = re.fullmatch(r"([vsa])(\d+)", tok)
    if m: return {(m.group(1), int(m.group(2)))}
    m = re.fullmatch(r"([vsa])\[(\d+):(\d+)\]", tok)
    if m: return {(m.group(1), k) for k in range(int(m.group(2)), int(m.group(3)) + 1)}
    if tok in ("vcc", "vcc_lo", "vcc_hi"): return {("x", "vcc")}
    if tok in ("exec", "exec_lo", "exec_hi"): return {("x", "exec")}
    if tok == "m0": return {("x", "m0")}
    return set()

class Ins:
    def __init__(self, text):
        self.text = text
        t = text.split(";")[0].strip()
        parts = t.split(None, 1)
        self.op = parts[0]
        rest = parts[1] if len(parts) > 1 else ""
        ops = [o.strip() for o in re.split(r",(?![^\[]*\])", rest)] if rest else []
        mods = ""
        if ops:
            sp = ops[-1].split(None, 1)
            ops[-1] = sp[0]
            mods = sp[1] if len(sp) > 1 else ""
        self.ops = ops; self.mods = mods
        op = self.op
        self.mfma = op.startswith("v_mfma")
        self.valu = op.startswith("v_") and not self.mfma
        self.vmem = op.startswith("global_") or op.startswith("buffer_")
        self.ds = op.startswith("ds_")
        self.salu = op.startswith("s_")
        self.trans = op in TRANS or op.replace("_e32", "") in TRANS
        self.dpp = "_dpp" in op
        self.perml = op.startswith("v_permlane")
        self.rdlane = op.startswith("v_readlane") or op.startswith("v_readfirstlane")
        self.ws = 1
        if op == "s_nop": self.ws = int(ops[0], 0) + 1
        R = [regs_of(o) for o in ops]
        self.w = set(); self.r = set(); self.srcC = set(); self.ab = set(); self.sdata = set(); self.wide = False
        self.ldsdma = False
        if self.mfma:
            self.w = R[0]; self.ab = R[1] | R[2]; self.srcC = R[3]; self.r = self.ab | self.srcC
        elif self.valu:
            if self.perml:
                self.w = R[0] | R[1]; self.r = R[0] | R[1]
            else:
                self.w = set(R[0]); self.r = set().union(*R[1:]) if len(R) > 1 else set()
                if op.startswith("v_add_co") or op.startswith("v_addc_co") or op.startswith("v_sub_co"):
                    self.w |= R[1]; self.r = set().union(*R[2:])
                if op.startswith("v_fmac") or self.dpp or op.startswith("v_writelane"): self.r |= R[0]
                if op.startswith("v_cndmask") and len(ops) == 3: self.r |= {("x", "vcc")}
                if op.startswith("v_cmpx"): self.w |= {("x", "exec")}
        elif self.vmem:
            if "_lds_" in op or " lds" in (" " + mods):
                self.ldsdma = True; self.r = set().union(*R) | {("x", "m0")}
            elif "load" in op:
                self.w = R[0]; self.r = set().union(*R[1:])
            else:
                if op.startswith("global_"): self.sdata = R[1]
                else: self.sdata = R[0]
                self.r = set().union(*R)
                self.wide = "x4" in op or "x3" in op
        elif self.ds:
            if "read" in op or "permute" in op or "swizzle" in op:
                self.w = R[0]; self.r = set().union(*R[1:])
            else:
                self.r = set().union(*R)
        elif self.salu:
            if op.startswith("s_cmp") or op.startswith("s_cbranch") or op in ("s_branch", "s_waitcnt", "s_nop", "s_barrier", "s_sleep", "s_endpgm", "s_setprio", "s_bitcmp1_b32", "s_bitcmp0_b32"):
                self.r = set().union(*R) if R else set()
            else:
                self.w = R[0] if R else set(); self.r = set().union(*R[1:]) if len(R) > 1 else set()
                if "saveexec" in op: self.w = self.w | {("x", "exec")}

def isv(s): return {x for x in s if x[0] in "va"}
def iss(s): return {x for x in s if x[0] == "s" or x == ("x", "vcc")}

def need(p, c):
    n = 0
    if p.mfma:
        if c.mfma:
            if p.w & c.ab: n = max(n, 8)
            if p.w & c.srcC and not (p.w == c.srcC): n = max(n, 6)
            if p.w & c.w and not (p.w == c.srcC): n = max(n, 8)
        elif c.valu or c.vmem or c.ds:
            if p.w & (c.r | c.w): n = max(n, 8)
        if c.valu and (p.srcC & c.w): n = max(n, 3)
    if p.valu:
        pv = isv(p.w); ps = iss(p.w)
        if c.mfma and pv & c.r: n = max(n, 2)
        if c.mfma and ("x", "exec") in p.w: n = max(n, 4)
        if (c.dpp or c.perml) and pv & c.r: n = max(n, 2)
        if c.rdlane and pv & c.r: n = max(n, 1)
        if p.trans and c.valu and not c.trans and pv & c.r: n = max(n, 1)
        if p.trans and c.valu and c.trans and pv & c.r: n = max(n, 1)
        if ps:
            if c.valu and ps & c.r: n = max(n, 4 if (c.rdlane or c.op.startswith("v_writelane")) else 2)
            if c.vmem and ps & c.r: n = max(n, 5)
            if c.salu and ps & c.r and not c.op.startswith("s_cbranch"): n = max(n, 1)
        if ("x", "exec") in p.w and c.valu: n = max(n, 5 if c.dpp else 4 if (c.perml or c.rdlane) else 2)
    if p.op.startswith("v_dot") and (c.valu or c.mfma or c.vmem or c.ds) and p.w & (c.r | c.w):
        same_acc = c.op == p.op and not (p.w & (regs_of(c.ops[1]) | regs_of(c.ops[2])))
        if not same_acc: n = max(n, 3)
    if p.vmem and p.wide and (c.valu or c.mfma or c.ds or c.vmem) and p.sdata & c.w: n = max(n, 2)
    if p.salu and ("x", "m0") in p.w and c.ldsdma: n = max(n, 1)
    return n

class Asm:
    def __init__(self):
        self.lines = []
        self.hists = [[]]
        self.pending = {}
        self.nlab = 0
        self.nops = 0
        self.colds = []
    def raw(self, s): self.lines.append(s)
    def c(self, s): self.lines.append("    ; " + s)
    def _push(self, ins):
        for h in self.hists:
            h.append(ins)
            if len(h) > 24: del h[0]
        uniq = []
        for h in self.hists:
            if not any(len(h) == len(u) == 24 and all(a is b for a, b in zip(h, u)) for u in uniq): uniq.append(h)
        self.hists = uniq
    def __call__(self, text):
        ins = Ins(text)
        req = 0
        for h in self.hists:
            dist = 0
            for p in reversed(h):
                nd = need(p, ins)
                if nd > dist: req = max(req, nd - dist)
                dist += p.ws
                if dist >= 20: break
        while req > 0:
            k = min(req, 16)
            nop = Ins(f"s_nop {k-1}")
            self.lines.append(f"    s_nop {k-1}")
            self._push(nop); req -= k; self.nops += 1
        self.lines.append("    " + text)
        self._push(ins)
        if ins.op.startswith("s_cbranch") or ins.op == "s_branch":
            tgt = ins.ops[0]
            self.pending.setdefault(tgt, []).extend([list(h) for h in self.hists])
            if ins.op == "s_branch": self.hists = []
    def label(self, name):
        self.lines.append(name + ":")
        self.hists = self.hists + self.pending.pop(name, [])
        if not self.hists: self.hists = [[]]
    def cold(self, label, func):
        self.colds.append((label, func))
    def flush_cold(self):
        while self.colds:
            label, func = self.colds.pop(0)
            self.hists = []
            self.label(label)
            func()
    def newlabel(self, base="L"):
        self.nlab += 1
        return f"{base}_{self.nlab}"
    def text(self): return "\n".join(self.lines) + "\n"

class Regs:
    def __init__(self, kind, lo, hi):
        self.kind = kind; self.next = lo; self.hi = hi; self.names = {}
    def alloc(self, name, n=1, align=None):
        if align is None: align = 1 if n == 1 else 2 if n == 2 else 4
        self.next = (self.next + align - 1) // align * align
        r = self.next; self.next += n
        assert self.next <= self.hi, f"out of {self.kind} regs at {name}"
        self.names[name] = (r, n)
        return r
```

```python
import sys, math, struct
sys.path.insert(0, "gen")
from asmlib import Asm, Regs

KN = "interleave_layers__sliding_block_cached__mixer_channel_mlp__decode_kernel"
DEFAULTS = dict(TIMING=0, D1=2, D2=2, D5=2, DX=2, RSLEEP=4, DEPTH=24, FLAV="nt", LIMIT=40000, FORCE_SLOW=0, TSLEEP=2, CSLEEP=4,
                WQFIRST=10, WARM=12, LIGHT=0, NOCOMP=0, DKV=32, TILEW=0, GATE=1, PRE=0, PREV=8, VGATE=1, XB=12, XPRE=0, C2PRE=0, XSL=4, C2SL=4, XAT=1, I1AT=0, DL=10, DH=28, DO=24, DW=10, RPIPE=1, M1=1, M2=1, M5=1, C2N=64, D20=3, D50=4, STREAM=1, XEARLY=1, C2AT=0, WSOFF=0)

def f32(x): return struct.unpack("<I", struct.pack("<f", x))[0]

LSTRIDE = 0x200000
E1 = 0x000000; E2 = 0x080000; E5 = 0x100000; STQ = 0x188400; ML = 0x180000; ST1 = 0x188000
XSA = 0x18C000; XSB = 0x190000; CAN2 = 0x194000; CAN1 = 0x19C000; CAN5 = 0x19C400
SH = 2 * LSTRIDE
E3 = SH; ECQ = SH + 0x100000; EC1 = SH + 0x120000; XID = SH + 0x140000; EPOCH = SH + 0x141000
TSOFF = 0x8000000
R0, R1, R2, R3 = 0, 32768, 65536, 98304
SC = 131072
QX = SC; OX = SC + 2048; HX = SC + 4096; OW = SC + 6144; MLW = OW + 4 * 4224; FL = MLW + 256
FL_Q, FL_OW, FL_O, FL_H, FL_RED, FL_WQC, FL_KC, FL_C, FL_XI, FL_I1, FL_G2, FL_G5, FL_PRE, FL_XS, FL_VG, FL_MODE, FL_T = 0, 4, 8, 12, 16, 20, 24, 28, 32, 36, 40, 44, 48, 52, 56, 60, 64
LDS_BYTES = 163840
TAGC = (0x00, 0x55, 0xA3, 0xCE)
KAPPA = math.log2(math.e) / math.sqrt(128.0)
GK1 = -2.0 * math.log2(math.e) * math.sqrt(2.0 / math.pi)
GK2 = GK1 * 0.044715
NWAVES = 6
RW = 5

def generate(P):
    a = Asm()
    V = Regs("v", 1, 256); S = Regs("s", 3, 102)
    def v(n, k=1): return V.alloc(n, k)
    def s(n, k=1): return S.alloc(n, k)
    def vr(b, n): return f"v[{b}:{b+n-1}]"
    def sr(b, n=2): return f"s[{b}:{b+n-1}]"
    sI = s("i")
    sX = s("x", 2); sK = s("k", 2); sVv = s("v", 2); sWQ = s("wq", 2); sWO = s("wo", 2); sBX = s("bx", 2)
    sW1 = s("w1", 2); sB1 = s("b1", 2); sW2 = s("w2", 2); sB2 = s("b2", 2); sOUT = s("out", 2); sDBG = s("dbg", 2)
    sWS = s("ws", 2); sL = s("L", 2)
    assert sX == 4 and sWS == 28
    sR = s("r"); sG = s("g"); sS = s("s"); sW = s("w")
    sTA = s("TA", 4); sTB = s("TB", 4)
    sT0 = s("t0", 2); sT1 = sT0 + 1; sT2 = s("t2", 2); sT3 = sT2 + 1
    sM1 = [s(f"m1{k}", 2) for k in range(3)]
    sB0 = s("b0", 2); sH3 = s("h3", 2); sH5 = s("h5", 2); sX35 = s("x35", 2)
    sEP = s("ep"); sLay = s("lay"); sMode = s("mode"); sCnt = s("cnt"); sVrd = s("vread"); sSq = s("sq"); sCM = s("cm", 2)
    sKap = s("kap"); sEps = s("eps"); sInvN = s("invn"); sG2 = s("g2"); sTW = s("tw")
    free_pairs = []
    while S.next + 2 <= 101 and P["TIMING"]: free_pairs.append(s("ts", 2))
    loop_pairs = free_pairs + [sK, sVv, sWQ, sWO, sBX, sW1, sW2, sB2, sDBG, sOUT, sX]
    vL = 0
    t = [v(f"t{k}") for k in range(14)]
    vFF = v("FF")
    XS_B = v("XSB", 16); ACC = v("ACC", 36); G = v("G", 32); XB = G + 16; DD = ACC + 32; BB = ACC + 8
    SEL1 = v("SEL1", 4); SEL2 = v("SEL2", 4); SELM = v("SELM", 4); KC = v("KC", 8); C1 = v("C1", 4); B1 = v("B1", 4)
    WQ = v("WQ", 32); KK = v("KK", 32); TT = v("TT", 32)
    vTS = v("TS"); vONE = v("ONE"); vRC = v("RC")
    names = ["E1s", "E1s2", "E1l", "SQl", "S1l", "E2s", "MLs", "MLl", "E2l", "E3s", "XSl", "E5s", "E5l",
             "TRS", "TRV", "CAN", "QXW", "QXW2", "XRD", "XRD2", "OXW", "HXW", "OWW", "OWR", "MLWW", "MLWR", "FLG"]
    A = {n: v("a" + n) for n in names}
    A["CQs"] = C1; A["CQl"] = C1 + 1; A["C1s"] = C1 + 2
    A["C1l"] = t[9]
    XRES = WQ; B2 = WQ + 2
    for k, n in enumerate(["E3l", "XSs", "XSs2", "OUT", "C2l", "C8l", "C8s", "STs", "XSw", "XSw2"]): A[n] = WQ + 4 + k
    assert t[1] % 2 == 0 and t[3] % 4 == 0
    FULL = 0xFFFFFFFF; MC8 = 0x00FF00FF; MEQ8 = 0x01000100
    stamp_names = []; pro_names = []; site_names = []; red_names = []
    def pstamp(name):
        if not P["TIMING"]: return
        k = 60 + len(pro_names); pro_names.append(name)
        a(f"s_memtime {sr(free_pairs[0])}"); a("s_waitcnt lgkmcnt(0)"); a(f"v_writelane_b32 v{vTS}, s{free_pairs[0]}, {k}")
    def stamp(name, lst=stamp_names):
        if not P["TIMING"]: return
        if P["LIGHT"] and name not in ("xs2", "r_o", "r_x2", "a_xi", "a_g2", "E2st"): return
        k = len(lst); lst.append(name)
        a(f"s_memtime {sr(loop_pairs[k])}")
    def dump_stamps(n):
        if not P["TIMING"]: return
        a("s_waitcnt lgkmcnt(0)")
        a(f"s_mul_i32 s{sT0}, s{sLay}, 28")
        for k in range(n):
            a(f"s_add_u32 m0, s{sT0}, {k}"); a(f"v_writelane_b32 v{vTS}, s{loop_pairs[k]}, m0"); a(f"s_mov_b32 s{loop_pairs[k]}, 0")
    def lgkm(n):
        a(f"s_waitcnt lgkmcnt({0 if (P['TIMING'] and not P['LIGHT']) else n})")
    def execm(lo, hi=None):
        if hi is None: hi = lo
        if lo == FULL and hi == FULL: a("s_mov_b64 exec, -1")
        elif hi == 0 and lo <= 64: a(f"s_mov_b64 exec, {lo}")
        else:
            a(f"s_mov_b32 exec_lo, {lo:#x}"); a(f"s_mov_b32 exec_hi, {hi:#x}")
    def back(lbl):
        a("s_nop 4"); a(f"s_branch {lbl}")
    role = [0]
    def count_site(name):
        k = sum(1 for r_, _ in site_names if r_ == role[0]); site_names.append((role[0], name))
        assert k < 32
        def f():
            if P["TIMING"] and not (P["LIGHT"] and name not in ("E1", "E2", "E5", "stat", "cq", "c1", "xid", "a_c2")):
                a(f"s_lshl_b32 s{sT0}, s{sLay}, 5"); a(f"s_add_u32 m0, s{sT0}, {k}")
                a(f"v_readlane_b32 s{sT0}, v{vRC}, m0"); a("s_nop 3"); a(f"s_add_u32 s{sT0}, s{sT0}, 1"); a(f"v_writelane_b32 v{vRC}, s{sT0}, m0")
        return f
    def bounded(lbl):
        a(f"s_add_u32 s{sCnt}, s{sCnt}, 1"); a(f"s_cmp_lt_u32 s{sCnt}, {P['LIMIT']}")
        a(f"s_cbranch_scc1 {lbl}"); a("s_endpgm")
    def retry(lbl, sleep=0, name=None):
        st = a.newlabel("rt")
        a(f"s_cbranch_vccnz {st}")
        cs = count_site(name or lbl)
        def f():
            if sleep: a(f"s_sleep {sleep}")
            cs(); bounded(lbl)
        a.cold(st, f)
    def only_if(cmp_instr, func, base="c"):
        st = a.newlabel(base); rt = a.newlabel(base + "r")
        a(cmp_instr); a(f"s_cbranch_scc1 {st}")
        a.label(rt)
        def f():
            func(); back(rt)
        a.cold(st, f)
    def first_layer(func): only_if(f"s_cmp_eq_u32 s{sLay}, 0", func, "l0")
    def lds_wait(off, val, sleep=0, name=None):
        lb = a.newlabel("lw"); a.label(lb)
        a(f"ds_read_b32 v{t[3]}, v{A['FLG']} offset:{off}")
        a("s_waitcnt lgkmcnt(0)")
        a(f"v_cmp_gt_u32 vcc, {val}, v{t[3]}")
        retry(lb, sleep, name or ("lds%d" % off))
    def lds_arrive(off):
        execm(1, 0)
        a(f"ds_add_u32 v{A['FLG']}, v{vONE} offset:{off}")
        execm(FULL)
    def sync(off, name, arrive=True, target=4):
        st = a.newlabel("sy"); rt = a.newlabel("syr")
        a(f"s_cmp_eq_u32 s{sLay}, 0"); a(f"s_cbranch_scc1 {st}")
        if arrive: a("s_waitcnt lgkmcnt(0)")
        a("s_barrier")
        a.label(rt)
        def f():
            if arrive: lds_arrive(off)
            if target: lds_wait(off, target, name=name)
            back(rt)
        a.cold(st, f)
    def flag_sync(off, val, reads, name):
        lds_arrive(off)
        lb = a.newlabel("fs"); st = a.newlabel("fsr")
        a.label(lb)
        a(f"ds_read_b32 v{t[3]}, v{A['FLG']} offset:{off}")
        reads()
        def test():
            a(f"v_cmp_gt_u32 vcc, {val}, v{t[3]}")
        def branch():
            a(f"s_cbranch_vccnz {st}")
        def f():
            lds_wait(off, val, name=name); a(f"s_branch {lb}")
        a.cold(st, f)
        return test, branch
    def tile_wait(k): lds_wait(FL_T + 4 * k, 1, sleep=P["TSLEEP"], name="tile%d" % k)
    def tr_read_std(dst, areg, region):
        for ks in range(4):
            for tt in range(2):
                for hh in range(2):
                    a(f"ds_read_b64_tr_b16 {vr(dst + (tt*4+ks)*4 + hh*2, 2)}, v{areg} offset:{region + tt*32 + (32*ks+16*hh)*256}")
    def tr_read_v():
        for k in range(1, 4): a(f"v_xor_b32 v{t[10+k]}, {k*64}, v{A['TRV']}")
        for dt in range(8):
            for hh in range(2):
                ar = A["TRV"] if dt < 2 else t[10 + (dt >> 1)]
                a(f"ds_read_b64_tr_b16 {vr(TT + dt*4 + hh*2, 2)}, v{ar} offset:{(dt&1)*32 + hh*4096}")
    def mfma(d, x, y, c_in): a(f"v_mfma_f32_16x16x32_bf16 {vr(d,4)}, {vr(x,4)}, {vr(y,4)}, {'0' if c_in is None else vr(c_in,4)}")
    def gemm8(wreg, xreg, swap=False, pre=None, fill=None):
        n = 0
        for ks in range(4):
            if pre: pre(ks)
            for tt in range(2):
                w_, x_ = wreg + (tt*4+ks)*4, xreg + ks*4
                if swap: mfma(ACC + tt*4, x_, w_, None if ks == 0 else ACC + tt*4)
                else: mfma(ACC + tt*4, w_, x_, None if ks == 0 else ACC + tt*4)
                if fill: fill(n)
                n += 1
    def rd_xb(region):
        for ks in range(4): a(f"ds_read_b128 {vr(XB+4*ks,4)}, v{A['XRD2' if ks & 1 else 'XRD']} offset:{region-SC+ks*512}")
    def xb_gemm(region, wreg, fill=None, shadow=None):
        rd_xb(region)
        if shadow: shadow()
        gemm8(wreg, XB, pre=lambda ks: lgkm(3 - ks), fill=fill)
    def tag_into(dst, src, tg):
        for j in range(4): a(f"v_bfi_b32 v{dst+j}, v{vFF}, s{tg+j}, v{src+j}")
    def tag_check(acc, src, tg, first):
        for j in range(4): a(f"v_xor_b32 v{src+j}, s{tg+j}, v{src+j}")
        if first:
            a(f"v_or3_b32 v{acc}, v{src}, v{src+1}, v{src+2}"); a(f"v_or_b32 v{acc}, v{acc}, v{src+3}")
        else:
            a(f"v_or3_b32 v{acc}, v{acc}, v{src}, v{src+1}"); a(f"v_or3_b32 v{acc}, v{acc}, v{src+2}, v{src+3}")
    def tag_finish(acc):
        a(f"v_and_b32 v{acc}, 0xff, v{acc}"); a(f"v_cmp_ne_u32 vcc, 0, v{acc}")
    def sent_check(acc, src, n, first):
        k = 0
        if first:
            a(f"v_max3_u32 v{acc}, v{src}, v{src+1}, v{src+2}"); k = 3
        while k < n:
            if k + 1 < n: a(f"v_max3_u32 v{acc}, v{acc}, v{src+k}, v{src+k+1}"); k += 2
            else: a(f"v_max_u32 v{acc}, v{acc}, v{src+k}"); k += 1
    def merge_tiles():
        for j in range(4): a(f"v_mov_b32_dpp v{ACC+j}, v{ACC+4+j} row_shr:8 row_mask:0xf bank_mask:0xf")
    def store_mode(instr):
        st = a.newlabel("ss"); rt = a.newlabel("ssr")
        a(f"s_cmp_eq_u32 s{sMode}, 0"); a(f"s_cbranch_scc1 {st}")
        a(instr)
        a.label(rt)
        def f():
            a(instr + " sc1"); back(rt)
        a.cold(st, f)
    def red2(which, xs, tmps, op="v_add_f32", mid=None):
        for x, tm in zip(xs, tmps): a(f"v_mov_b32 v{tm}, v{x}")
        if mid: mid()
        for x, tm in zip(xs, tmps): a(f"v_permlane{which}_swap_b32 v{x}, v{tm}")
        for x, tm in zip(xs, tmps): a(f"{op} v{x}, v{x}, v{tm}")
    def dpp(op, d, x, y, ctl): a(f"{op}_dpp v{d}, v{x}, v{y} {ctl} row_mask:0xf bank_mask:0xf")
    def set_tags():
        a(f"s_add_u32 s{sT0}, s{sEP}, 1"); a(f"s_lshl_b32 s{sT0}, s{sT0}, 3"); a(f"s_and_b32 s{sT0}, s{sT0}, 0xff")
        for j in range(4): a(f"s_xor_b32 s{sTA+j}, s{sT0}, {TAGC[j]:#x}")
        for j in range(4): a(f"s_xor_b32 s{sTB+j}, s{sTA+j}, 1")
        a(f"s_xor_b32 s{sTW}, s{sEP}, 0x2545f491"); a(f"s_mul_i32 s{sTW}, s{sTW}, 0x9e3779b1"); a(f"s_add_u32 s{sTW}, s{sTW}, 0x632be5ab")
    def next_layer():
        a(f"s_mov_b32 s{sLay}, 1")
        a(f"s_add_u32 s{sL}, s{sL}, {LSTRIDE:#x}"); a(f"s_addc_u32 s{sL+1}, s{sL+1}, 0")
        for j in range(4): a(f"s_xor_b32 s{sTA+j}, s{sTA+j}, 2")
        for j in range(4): a(f"s_xor_b32 s{sTB+j}, s{sTB+j}, 2")
    def uni(terms, const):
        first = True
        for sreg, mul in terms:
            d = sT0 if first else sT1
            if mul & (mul - 1) == 0: a(f"s_lshl_b32 s{d}, s{sreg}, {int(math.log2(mul))}")
            else: a(f"s_mul_i32 s{d}, s{sreg}, {mul}")
            if not first: a(f"s_add_u32 s{sT0}, s{sT0}, s{sT1}")
            first = False
        if first: a(f"s_mov_b32 s{sT0}, {const:#x}")
        elif const: a(f"s_add_u32 s{sT0}, s{sT0}, {const:#x}")
    def addr(name, lane_terms, terms, const):
        d = A[name] if isinstance(name, str) else name
        uni(terms, const)
        src = f"s{sT0}"
        if not lane_terms: a(f"v_mov_b32 v{d}, s{sT0}")
        for vreg, mul in lane_terms:
            if mul & (mul - 1) == 0: a(f"v_lshl_add_u32 v{d}, v{vreg}, {int(math.log2(mul))}, {src}")
            else:
                if src.startswith("s"): a(f"v_mov_b32 v{d}, {src}"); src = f"v{d}"
                a(f"s_mov_b32 s{sT1}, {mul}"); a(f"v_mad_u32_u24 v{d}, v{vreg}, s{sT1}, {src}")
            src = f"v{d}"
    def swz(d, row, b, off, base, tmp):
        a(f"v_xor_b32 v{tmp}, v{b}, v{row}"); a(f"v_and_b32 v{tmp}, 7, v{tmp}")
        a(f"v_lshlrev_b32 v{d}, 7, v{row}"); a(f"v_lshl_add_u32 v{d}, v{tmp}, 4, v{d}")
        if off is not None: a(f"v_add_u32 v{d}, v{off}, v{d}")
        a(f"v_add_u32 v{d}, {base}, v{d}")
    cC, cKQ, cB8, cH3, cH5, cL31, cRR, cCC = t[0], t[1], t[2], t[4], t[5], t[6], t[7], t[11]
    x0, x1, x2, x3 = t[8], t[9], t[10], t[13]
    def lane_bits():
        a(f"v_and_b32 v{cC}, 15, v0"); a(f"v_lshrrev_b32 v{cKQ}, 4, v0"); a(f"v_and_b32 v{cB8}, 7, v0")
        a(f"v_bfe_u32 v{cH3}, v0, 3, 1"); a(f"v_lshrrev_b32 v{cH5}, 5, v0"); a(f"v_and_b32 v{cL31}, 31, v0")
        a(f"v_bfe_u32 v{cRR}, v0, 2, 2"); a(f"v_and_b32 v{cCC}, 3, v0")
    def load_epoch():
        if P["WSOFF"]:
            a(f"s_add_u32 s{sWS}, s{sWS}, {P['WSOFF'] << 20:#x}"); a(f"s_addc_u32 s{sWS+1}, s{sWS+1}, 0")
        a(f"s_add_u32 s{sT2}, s{sWS}, {EPOCH:#x}"); a(f"s_addc_u32 s{sT3}, s{sWS+1}, 0")
        a(f"s_load_dword s{sEP}, {sr(sT2)}, 0")
        a(f"s_mov_b32 s{sL}, s{sWS}"); a(f"s_mov_b32 s{sL+1}, s{sWS+1}")
    def stat_store(d, areg):
        a(f"v_cndmask_b32 v{d}, v{d}, v{d+1}, {sr(sM1[0])}"); a(f"v_cndmask_b32 v{d}, v{d}, v{d+2}, {sr(sM1[1])}")
        a(f"v_cndmask_b32 v{d}, v{d}, v{d+3}, {sr(sM1[2])}"); a(f"v_mov_b32 v{d+1}, s{sTW}")
        execm(0x00F0000F, 0xFF)
        a(f"global_store_dwordx2 v{areg}, {vr(d,2)}, {sr(sL)} sc1")
        execm(FULL)

    a.raw(f"; @launch grid=(256,1,1) block=({64*NWAVES},1,1) lds={LDS_BYTES}")
    a.raw('.amdgcn_target "amdgcn-amd-amdhsa--gfx950"\n.text')
    a.raw(f".globl {KN}\n.p2align 8\n.type {KN},@function\n{KN}:")
    a("s_cmp_ge_u32 s2, 256"); a("s_cbranch_scc1 L_end")
    a(f"s_load_dwordx16 s[4:19], s[0:1], 0")
    a(f"s_load_dwordx8 s[20:27], s[0:1], 64")
    a(f"s_load_dwordx2 {sr(sWS)}, s[0:1], 96")
    a(f"v_lshrrev_b32 v{t[0]}, 6, v0")
    a(f"v_and_b32 v0, 63, v0")
    a(f"v_readfirstlane_b32 s{sW}, v{t[0]}")
    a(f"s_and_b32 s{sI}, s2, 7"); a(f"s_lshr_b32 s{sR}, s2, 3")
    a(f"s_lshr_b32 s{sG}, s{sR}, 3"); a(f"s_and_b32 s{sS}, s{sR}, 7")
    a(f"s_mov_b32 s{sLay}, 0"); a(f"s_mov_b32 s{sCnt}, 0")
    a(f"v_mov_b32 v{A['FLG']}, {FL}"); a(f"v_mov_b32 v{vONE}, 1")
    if P["TIMING"]:
        a(f"v_mov_b32 v{vTS}, 0"); a(f"v_mov_b32 v{vRC}, 0")
        a(f"s_memrealtime {sr(free_pairs[1])}"); a(f"s_memtime {sr(free_pairs[0])}"); a("s_waitcnt lgkmcnt(0)")
        a(f"v_writelane_b32 v{vTS}, s{free_pairs[1]}, 56"); a(f"v_writelane_b32 v{vTS}, s{free_pairs[0]}, 57")
    a(f"s_cmp_eq_u32 s{sW}, 4"); a("s_cbranch_scc1 L_loader")
    if P["NOCOMP"]:
        a(f"v_lshlrev_b32 v{t[0]}, 2, v0"); a(f"v_add_u32 v{t[0]}, {FL}, v{t[0]}"); a(f"v_mov_b32 v{t[1]}, 8")
        a(f"ds_write_b32 v{t[0]}, v{t[1]}"); a("s_waitcnt lgkmcnt(0)"); a("s_barrier"); a("s_branch L_dump")
    a(f"s_cmp_eq_u32 s{sW}, {RW}"); a("s_cbranch_scc1 L_reducer")

    a("s_setprio 2")
    lane_bits()
    xoff = t[12]
    addr(xoff, [(cC, 2048), (cKQ, 8)], [(sI, 256)], 0)
    a(f"v_cmp_eq_u32 vcc, 8, v{cC}"); a(f"v_mov_b32 v{x0}, 0"); a(f"v_mov_b32 v{x1}, 0x3f803f80")
    a(f"v_cndmask_b32 v{x0}, v{x0}, v{x1}, vcc")
    for j in range(16): a(f"v_mov_b32 v{XS_B+j}, v{x0}")
    a("s_waitcnt lgkmcnt(0)")
    execm(MC8)
    for ks in range(4):
        for hh in range(2):
            a(f"global_load_dwordx2 {vr(XS_B+ks*4+hh*2,2)}, v{xoff}, {sr(sX)} offset:{ks*64+hh*32}")
    execm(FULL)
    load_epoch()
    a("s_barrier")
    addr("CQs", [(cC, 4)], [(sG, 16384), (sS, 2048), (sI, 256), (sW, 64)], ECQ)
    a(f"v_and_b32 v{x0}, 1, v{cKQ}")
    a(f"v_add_u32 v{A['E1s']}, {(E1 - ECQ) & 0xffffffff:#x}, v{A['CQs']}")
    a(f"v_lshl_add_u32 v{A['E1s']}, v{x0}, 18, v{A['E1s']}"); a(f"v_lshl_add_u32 v{A['E1s']}, v{cH5}, 17, v{A['E1s']}")
    a(f"v_add_u32 v{A['E1s2']}, 0x10000, v{A['E1s']}")
    a(f"v_lshrrev_b32 v{x0}, 2, v0"); a(f"v_lshlrev_b32 v{x0}, 8, v{x0}")
    a(f"v_lshrrev_b32 v{x1}, 1, v{cCC}"); a(f"v_lshl_add_u32 v{x0}, v{x1}, 4, v{x0}")
    a(f"v_and_b32 v{x1}, 1, v{cCC}"); a(f"v_lshl_add_u32 v{x0}, v{x1}, 3, v{x0}")
    a(f"v_xor_b32 v{x1}, s{sW}, v{cRR}"); a(f"v_lshl_add_u32 v{A['TRS']}, v{x1}, 6, v{x0}")
    a(f"s_lshl_b32 s{sT0}, s{sW}, 13"); a(f"s_add_u32 s{sT0}, s{sT0}, {R2}"); a(f"v_add_u32 v{x0}, s{sT0}, v{x0}")
    a(f"v_lshl_add_u32 v{A['TRV']}, v{cRR}, 6, v{x0}")
    addr("E2s", [(cH5, 16384), (cL31, 8)], [(sG, 131072), (sW, 32768), (sI, 2048), (sS, 256)], E2)
    addr("MLs", [(cH5, 8)], [(sG, 8192), (sI, 1024), (sS, 128), (sW, 16)], ML)
    addr("E5s", [(cKQ, 128), (cC, 16)], [(sR, 16384), (sW, 4096), (sI, 512)], E5)
    a(f"v_and_b32 v{x0}, 1, v{cKQ}")
    addr(t[12], [(x0, 32), (cH5, 16), (cH3, 8)], [(sR, 256), (sW, 64)], 0)
    only_if(f"s_cmp_lt_u32 s{sR}, 28", lambda: a(f"global_load_dwordx2 {vr(B1+2,2)}, v{t[12]}, {sr(sB1)}"), "e")
    a(f"s_lshl_b32 s{sT0}, s{sW}, 2"); a(f"v_lshl_add_u32 v{x1}, v{cH5}, 1, s{sT0}"); a(f"v_add_u32 v{x1}, v{x1}, v{cH3}")
    a(f"v_lshlrev_b32 v{x2}, 3, v{x0}")
    swz(A["HXW"], x1, cB8, x2, HX, x3)
    a(f"v_and_b32 v{x1}, 12, v{cC}"); a(f"v_add_u32 v{x1}, v{x1}, v{x0}"); a(f"v_and_b32 v{x2}, 1, v{cC}"); a(f"v_lshl_add_u32 v{x1}, v{x2}, 1, v{x1}")
    a(f"s_lshl_b32 s{sT0}, s{sW}, 1"); a(f"v_add_u32 v{G}, s{sT0}, v{cH5}")
    a(f"v_bfe_u32 v{x2}, v{cC}, 1, 1"); a(f"v_lshlrev_b32 v{G+1}, 3, v{x2}")
    swz(A["OXW"], x1, G, G+1, OX, x3)
    a(f"v_and_b32 v{x1}, 12, v{cC}"); a(f"v_add_u32 v{x1}, v{x1}, v{x2}")
    a(f"v_and_b32 v{x2}, 1, v{cC}"); a(f"v_lshlrev_b32 v{x2}, 3, v{x2}"); a(f"v_lshl_add_u32 v{x2}, v{x0}, 2, v{x2}")
    swz(A["QXW"], x1, G, x2, QX, x3)
    a(f"v_add_u32 v{x1}, 2, v{x1}")
    swz(A["QXW2"], x1, G, x2, QX, x3)
    swz(A["XRD"], cKQ, cB8, None, SC, x3)
    a(f"v_xor_b32 v{A['XRD2']}, 64, v{A['XRD']}")
    addr("CQl", [(vL, 16)], [(sG, 16384), (sW, 4096)], ECQ)
    addr("E1l", [(vL, 16)], [(sI, 65536), (sG, 16384), (sW, 4096)], E1)
    a(f"v_lshrrev_b32 v{x0}, 3, v0")
    addr("SQl", [(x0, 128)], [(sI, 16)], STQ)
    addr("S1l", [(vL, 16)], [], ST1)
    addr("MLl", [(cKQ, 128), (cH3, 1024)], [(sG, 8192), (sW, 2048), (sS, 8)], ML)
    addr("E2l", [(vL, 16)], [(sR, 16384), (sW, 4096)], E2)
    addr("E3s", [(cH3, 16384), (cKQ, 4096), (cB8, 16)], [(sI, 131072), (sW, 32768), (sR, 128)], E3)
    addr("XSl", [(cKQ, 128), (cC, 16)], [(sI, 2048)], XSA)
    addr("E5l", [(cKQ, 512), (cC, 16)], [(sR, 16384), (sW, 4096)], E5)
    addr("C1s", [(cKQ, 16)], [(sR, 4096), (sW, 1024), (sI, 128)], EC1)
    addr("OWW", [(cB8, 528), (cH3, 64), (cKQ, 16)], [(sW, 4224)], OW)
    addr("OWR", [(cH5, 528), (cL31, 16)], [(sW, 1056)], OW)
    addr("MLWW", [(cC, 32)], [(sW, 8)], MLW)
    addr("MLWR", [(cH5, 32)], [(sW, 64)], MLW)
    addr("CAN", [], [(sG, 8192), (sI, 1024), (sS, 128)], CAN2)
    a(f"v_and_b32 v{x0}, 1, v{cC}"); a(f"v_lshlrev_b32 v{x0}, 4, v{x0}"); a(f"v_mov_b32 v{x1}, 0xffff"); a(f"v_lshlrev_b32 v{x1}, v{x0}, v{x1}")
    a(f"v_lshrrev_b32 v{x0}, 1, v{cB8}")
    a(f"v_cmp_eq_u32 {sr(sH3)}, 1, v{cH3}"); a(f"v_cmp_eq_u32 {sr(sH5)}, 1, v{cH5}")
    for j in range(4):
        a(f"v_cmp_eq_u32 vcc, {j}, v{x0}"); a(f"v_cndmask_b32 v{SELM+j}, 0, v{x1}, vcc")
        a(f"v_and_b32 v{x2}, 0x3f803f80, v{SELM+j}")
        a(f"v_cndmask_b32 v{SEL1+j}, v{x2}, 0, {sr(sH3)}"); a(f"v_cndmask_b32 v{SEL2+j}, 0, v{x2}, {sr(sH3)}")
    a(f"s_xor_b64 {sr(sX35)}, {sr(sH3)}, {sr(sH5)}")
    a(f"v_and_b32 v{x0}, 1, v0"); a(f"v_cmp_eq_u32 {sr(sB0)}, 1, v{x0}")
    a(f"s_mov_b32 s{sKap}, {f32(KAPPA):#x}"); a(f"s_mov_b32 s{sEps}, {f32(1e-5):#x}"); a(f"s_mov_b32 s{sInvN}, {f32(1/1024):#x}")
    a(f"s_mov_b32 s{sG2}, {f32(GK2):#x}")
    a(f"s_cmp_eq_u32 s{sW}, 0"); a(f"s_cselect_b32 s{sCM}, 1, 0"); a(f"s_mov_b32 s{sCM+1}, 0")
    a(f"s_lshl_b32 s{sT0}, s{sW}, 13"); a(f"s_add_u32 s{sT0}, s{sT0}, {R1}")
    a(f"v_lshlrev_b32 v{x0}, 8, v{cC}"); a(f"v_lshl_add_u32 v{x0}, v{cKQ}, 4, v{x0}"); a(f"v_add_u32 v{x0}, s{sT0}, v{x0}")
    for ks in range(4):
        a(f"v_xor_b32 v{x1}, {ks}, v{cCC}"); a(f"v_lshl_add_u32 v{KC+ks}, v{x1}, 6, v{x0}")
    a(f"v_mov_b32 v{vFF}, 0xff")
    a(f"s_mov_b32 s{sVrd}, 0"); a(f"s_mov_b32 s{sSq}, 4")
    a("s_waitcnt lgkmcnt(0)")
    set_tags()
    pstamp("setup")
    lds_wait(FL_C, 1, sleep=1, name="c")
    tile_wait(0)
    pstamp("t0seen")
    tr_read_std(WQ, A["TRS"], R0)
    a("s_waitcnt vmcnt(0) lgkmcnt(0)")
    pstamp("wq")
    if P["TIMING"]:
        for p_ in loop_pairs: a(f"s_mov_b32 s{p_}, 0")

    a.raw(".p2align 6")
    a.label("L_layer")
    gemm8(WQ, XS_B, swap=True, fill=lambda n: lds_arrive(FL_XS) if n == 1 else None)
    def pack_store_e1():
        for j in range(4): a(f"v_cvt_pk_bf16_f32 v{G+j}, v{ACC+j}, v{ACC+4+j}")
        for j in range(4): a(f"v_min_u32 v{G+j}, -2, v{G+j}")
        def store_cq():
            execm(0, 0xFFFF)
            a(f"global_store_dword v{A['CQs']}, v{G}, {sr(sWS)} sc1")
            execm(FULL)
        first_layer(store_cq)
        a(f"v_permlane32_swap_b32 v{G}, v{G+2}"); a(f"v_permlane32_swap_b32 v{G+1}, v{G+3}")
        a(f"global_store_dword v{A['E1s']}, v{G}, {sr(sL)} sc1")
        a(f"global_store_dword v{A['E1s2']}, v{G+1}, {sr(sL)} sc1")
    pack_store_e1()
    stamp("Qp")
    ST = ACC + 24
    chk = t[0]
    def ld4(dst, areg, base, offs):
        for j in range(4): a(f"global_load_dwordx4 {vr(dst+4*j,4)}, v{areg}, {sr(base)} offset:{offs[j]} sc1")
    K1 = [0, 1024, 2048, 3072]
    def qx_write(region):
        a(f"v_cvt_pk_bf16_f32 v{t[1]}, v{DD}, v{DD+2}"); a(f"v_cvt_pk_bf16_f32 v{t[2]}, v{DD+1}, v{DD+3}")
        return lambda: (a(f"ds_write_b32 v{A['QXW']}, v{t[1]} offset:{region-QX}"), a(f"ds_write_b32 v{A['QXW2']}, v{t[2]} offset:{region-QX}"))
    def e1_issue():
        ld4(G, A["E1l"], sL, K1)
        a(f"global_load_dwordx4 {vr(ST,4)}, v{A['SQl']}, {sr(sL)} sc1")
    def l0_after_q():
        lds_arrive(FL_WQC)
        a(f"v_lshlrev_b32 v{B1}, 16, v{B1+2}"); a(f"v_and_b32 v{B1+1}, 0xffff0000, v{B1+2}")
        a(f"v_lshlrev_b32 v{B1+2}, 16, v{B1+3}"); a(f"v_and_b32 v{B1+3}, 0xffff0000, v{B1+3}")
        lds_wait(FL_XI, 1, sleep=1, name="xi")
        if P["TIMING"] and not P["LIGHT"]: a(f"s_memtime {sr(loop_pairs[len(stamp_names_e1go)])}")
        ld4(BB, A["CQl"], sWS, K1)
        e1_issue()
        lds_arrive(FL_VG)
        tile_wait(1)
        for kt in range(2):
            for ks in range(4):
                a(f"ds_read_b128 {vr(KK+(kt*4+ks)*4,4)}, v{KC+ks} offset:{kt*4096}")
        a("s_waitcnt lgkmcnt(0)")
        lds_arrive(FL_MODE)
        lc0 = a.newlabel("cq"); lc1 = a.newlabel("cq"); lc2 = a.newlabel("cq")
        a(f"s_branch {lc2}")
        a.label(lc1)
        ld4(BB, A["CQl"], sWS, K1)
        e1_issue()
        a.label(lc2)
        a("s_waitcnt vmcnt(5)")
        sent_check(chk, BB, 16, True)
        a(f"v_cmp_eq_u32 vcc, -1, v{chk}")
        retry(lc1, P["RSLEEP"], "cq")
        for j in range(4): mfma(DD, SEL1 if j < 2 else SEL2, BB + 4*j, None if j == 0 else DD)
        qx_write(OX)()
        lds_arrive(FL_KC)
        lds_wait(FL_KC, 4, name="cx")
        rd_xb(OX); a("s_waitcnt lgkmcnt(0)")
        gemm8(KK, XB)
        for j in range(8): a(f"v_mov_b32 v{KC+j}, v{ACC+j}")
        a("s_branch L_e1p")
    stamp_names_e1go = list(stamp_names)
    st = a.newlabel("l0q")
    a(f"s_cmp_eq_u32 s{sLay}, 0"); a(f"s_cbranch_scc1 {st}")
    a.cold(st, l0_after_q)
    tr_read_v()
    a(f"s_mov_b32 s{sVrd}, 1")
    a("s_barrier")
    stamp("E1go")
    a.label("L_e1")
    e1_issue()
    a.label("L_e1p")
    for j in range(4):
        a(f"s_waitcnt vmcnt({4-j})")
        if j == 0: stamp("E1f")
        mfma(DD, SEL1 if j < 2 else SEL2, G + 4*j, None if j == 0 else DD)
        sent_check(chk, G + 4*j, 4, j == 0)
    a(f"v_cmp_eq_u32 vcc, -1, v{chk}")
    wr = qx_write(QX)
    retry("L_e1", P["RSLEEP"], "E1")
    wr()
    stamp("E1ok")
    tmp = t[2]; rq = t[8]; mq = t[10]
    def stat_head():
        dpp("v_add_f32", mq, ST+2, ST+2, "row_ror:8"); dpp("v_add_f32", rq, ST, ST, "row_ror:8")
        a(f"v_xor_b32 v{t[1]}, s{sTW}, v{ST+1}")
        red2(16, [mq, rq], [t[12], t[13]], mid=lambda: a(f"v_bitop3_b32 v{t[1]}, v{t[1]}, v{ST+3}, s{sTW} bitop3:0xf6"))
        red2(32, [mq, rq], [t[12], t[13]], mid=lambda: a(f"v_cmp_ne_u32 {sr(sT2)}, 0, v{t[1]}"))
    test, branch = flag_sync(FL_Q, f"s{sSq}", lambda: rd_xb(QX), "q")
    a("s_waitcnt vmcnt(0)")
    stat_head()
    lgkm(4); test()
    a(f"v_mul_f32 v{mq}, s{sInvN}, v{mq}"); a(f"v_mul_f32 v{rq}, s{sInvN}, v{rq}")
    a(f"v_fma_f32 v{rq}, -v{mq}, v{mq}, v{rq}"); a(f"v_max_f32 v{rq}, 0, v{rq}")
    branch()
    chain2 = [lambda: (a(f"v_add_f32 v{rq}, s{sEps}, v{rq}"), a(f"v_rsq_f32 v{rq}, v{rq}")),
              lambda: None,
              lambda: a(f"v_mul_f32 v{rq}, s{sKap}, v{rq}"),
              lambda: None, lambda: None, lambda: None, lambda: None, lambda: None]
    gemm8(KK, XB, pre=lambda ks: lgkm(3 - ks), fill=lambda n: chain2[n]())
    def st_again():
        cs = count_site("stat")
        ls = a.newlabel("sta"); a.label(ls)
        cs()
        a(f"global_load_dwordx4 {vr(ST,4)}, v{A['SQl']}, {sr(sL)} sc1")
        a("s_waitcnt vmcnt(0)")
        stat_head()
        a(f"s_mov_b64 vcc, {sr(sT2)}")
        retry(ls, P["RSLEEP"], "stat2")
        a(f"v_mul_f32 v{mq}, s{sInvN}, v{mq}"); a(f"v_mul_f32 v{rq}, s{sInvN}, v{rq}")
        a(f"v_fma_f32 v{rq}, -v{mq}, v{mq}, v{rq}"); a(f"v_max_f32 v{rq}, 0, v{rq}")
        for f_ in chain2: f_()
    only_if(f"s_cmp_lg_u64 {sr(sT2)}, 0", st_again, "sta")
    stamp("S")
    mx = t[0]
    for j in range(8): a(f"v_fma_f32 v{G+j}, -v{mq}, v{KC+j}, v{ACC+j}")
    a(f"v_max3_f32 v{mx}, v{G}, v{G+1}, v{G+2}"); a(f"v_max3_f32 v{tmp}, v{G+3}, v{G+4}, v{G+5}")
    a(f"v_max3_f32 v{mx}, v{mx}, v{G+6}, v{G+7}"); a(f"v_max_f32 v{mx}, v{mx}, v{tmp}")
    ON = G + 16
    red2(16, [mx], [tmp], "v_max_f32", mid=lambda: (a(f"v_mov_b32 v{ON}, 0x3f803f80"), a(f"v_mov_b32 v{ON+1}, 0x3f803f80")))
    red2(32, [mx], [tmp], "v_max_f32", mid=lambda: (a(f"v_mov_b32 v{ON+2}, 0x3f803f80"), a(f"v_mov_b32 v{ON+3}, 0x3f803f80")))
    MW = G + 8
    a(f"v_mul_f32 v{MW}, v{rq}, v{mx}")
    PB = G + 12
    for j in range(8): a(f"v_fma_f32 v{G+j}, v{G+j}, v{rq}, -v{MW}")
    for j in range(8): a(f"v_exp_f32 v{G+j}, v{G+j}")
    a(f"v_mov_b32 v{t[4]}, s{sTW}")
    for j in range(4): a(f"v_cvt_pk_bf16_f32 v{PB+j}, v{G+2*j}, v{G+2*j+1}")
    def late_v():
        tile_wait(2)
        tr_read_v()
        a("s_waitcnt lgkmcnt(0)")
    only_if(f"s_cmp_eq_u32 s{sVrd}, 0", late_v, "v")
    stamp("SM")
    def ow_write(p_):
        for j in range(4): a(f"v_cndmask_b32 v{ACC+8*p_+j}, v{ACC+8*p_+j}, v{ACC+8*p_+4+j}, {sr(sH3)}")
        a(f"ds_write_b128 v{A['OWW']}, {vr(ACC+8*p_,4)} offset:{p_*128}")
    for dt in range(4): mfma(ACC + 4*dt, TT + 4*dt, PB, None)
    a(f"s_mov_b64 exec, {sr(sCM)}")
    a(f"global_store_dword v{A['CAN']}, v{t[4]}, {sr(sL)} sc1")
    execm(FULL)
    mfma(ACC + 32, ON, PB, None)
    mfma(ACC + 16, TT + 16, PB, None)
    ow_write(0)
    mfma(ACC + 20, TT + 20, PB, None)
    mfma(ACC + 24, TT + 24, PB, None)
    ow_write(1)
    mfma(ACC + 28, TT + 28, PB, None)
    a(f"v_mov_b32 v{MW+1}, v{ACC+32}")
    execm(0xFF, 0)
    a(f"ds_write_b64 v{A['MLWW']}, {vr(MW,2)}")
    execm(FULL)
    ow_write(2); ow_write(3)
    stamp("PV")
    G2 = ACC
    def rd_ow():
        a(f"ds_read_b128 {vr(G2,4)}, v{A['MLWR']}"); a(f"ds_read_b128 {vr(G2+4,4)}, v{A['MLWR']} offset:16")
        for w2 in range(4): a(f"ds_read_b128 {vr(G+4*w2,4)}, v{A['OWR']} offset:{w2*4224}")
    test, branch = flag_sync(FL_OW, f"s{sSq}", rd_ow, "ow")
    MM = t[1]
    lgkm(4); test()
    a(f"v_max3_f32 v{MM}, v{G2}, v{G2+2}, v{G2+4}"); a(f"v_max_f32 v{MM}, v{MM}, v{G2+6}")
    for w2 in range(4): a(f"v_sub_f32 v{G2+2*w2}, v{G2+2*w2}, v{MM}")
    branch()
    for w2 in range(4): a(f"v_exp_f32 v{G2+2*w2}, v{G2+2*w2}")
    a(f"v_min_u32 v{MM}, -2, v{MM}")
    a(f"v_mul_f32 v{MM+1}, v{G2}, v{G2+1}")
    for w2 in range(1, 4): a(f"v_fmac_f32 v{MM+1}, v{G2+2*w2}, v{G2+2*w2+1}")
    lgkm(3)
    for h2 in range(2):
        a(f"v_pk_mul_f32 {vr(G+2*h2,2)}, {vr(G+2*h2,2)}, {vr(G2,2)} op_sel_hi:[1,0]")
    for w2 in range(1, 4):
        lgkm(3 - w2)
        for j in range(4): a(f"v_fmac_f32 v{G+j}, v{G+4*w2+j}, v{G2+2*w2}")
    a(f"v_cvt_pk_bf16_f32 v{G}, v{G}, v{G+1}"); a(f"v_cvt_pk_bf16_f32 v{G+1}, v{G+2}, v{G+3}")
    a(f"v_min_u32 v{MM+1}, -2, v{MM+1}")
    a(f"v_min_u32 v{G}, -2, v{G}"); a(f"v_min_u32 v{G+1}, -2, v{G+1}")
    a(f"global_store_dwordx2 v{A['E2s']}, {vr(G,2)}, {sr(sL)} sc1")
    execm(1)
    a(f"global_store_dwordx2 v{A['MLs']}, {vr(MM,2)}, {sr(sL)} sc1")
    execm(FULL)
    stamp("E2st")
    def rd_wo():
        a(f"v_add_u32 v{t[0]}, {R3}, v{A['TRS']}")
        tr_read_std(TT, t[0], 0)
    def go(flag, name, l0_extra, rd):
        st_ = a.newlabel("go"); rt_ = a.newlabel("gor")
        a(f"s_cmp_eq_u32 s{sLay}, 0"); a(f"s_cbranch_scc1 {st_}")
        rd(); a("s_barrier")
        a.label(rt_)
        def f():
            lds_wait(flag, 1, sleep=1, name=name)
            if l0_extra: l0_extra()
            else: back(rt_)
        a.cold(st_, f)
    go(FL_G2, "g2", None, rd_wo)
    stamp("E2go")
    MA = t[3]
    a.label("L_e2")
    for h in range(2): a(f"global_load_dwordx2 {vr(MA+2*h,2)}, v{A['MLl']}, {sr(sL)} offset:{h*512} sc1")
    ld4(G, A["E2l"], sL, K1)
    a("s_waitcnt vmcnt(4)")
    stamp("E2m")
    m_, l_ = t[8], t[10]
    a(f"v_max_f32 v{m_}, v{MA}, v{MA+2}")
    red2(16, [m_], [t[12]], "v_max_f32", mid=lambda: sent_check(chk, MA, 4, True))
    red2(32, [m_], [t[12]], "v_max_f32")
    F0, F1 = t[9], t[11]
    a(f"v_sub_f32 v{F0}, v{MA}, v{m_}"); a(f"v_sub_f32 v{F1}, v{MA+2}, v{m_}")
    a(f"v_exp_f32 v{F0}, v{F0}"); a(f"v_exp_f32 v{F1}, v{F1}")
    a(f"v_cvt_pk_bf16_f32 v{F0}, v{F0}, v{F0}"); a(f"v_cvt_pk_bf16_f32 v{F1}, v{F1}, v{F1}")
    AJ = G + 16; D0 = DD; D1 = ACC + 28
    for k in range(4): a(f"v_and_b32 v{AJ+k}, v{SELM+k}, v{F0}")
    for k in range(4): a(f"v_and_b32 v{AJ+4+k}, v{SELM+k}, v{F1}")
    a("s_waitcnt vmcnt(3)"); mfma(D0, AJ, G, None)
    a(f"v_and_b32 v{F0}, 0xffff0000, v{F0}"); a(f"v_and_b32 v{F1}, 0xffff0000, v{F1}")
    a("s_waitcnt vmcnt(2)"); mfma(D0, AJ + 4, G + 4, D0)
    a(f"v_mul_f32 v{l_}, v{F0}, v{MA+1}"); a(f"v_fmac_f32 v{l_}, v{F1}, v{MA+3}")
    a("s_waitcnt vmcnt(1)"); mfma(D1, AJ, G + 8, None)
    a(f"v_mov_b32 v{t[12]}, v{l_}")
    a("s_waitcnt vmcnt(0)"); mfma(D1, AJ + 4, G + 12, D1)
    a(f"v_permlane16_swap_b32 v{l_}, v{t[12]}"); a(f"v_add_f32 v{l_}, v{l_}, v{t[12]}")
    red2(32, [l_], [t[12]], mid=lambda: sent_check(chk, G, 4, False))
    sent_check(chk, G + 4, 4, False)
    a(f"v_mov_b32_dpp v{t[12]}, v{l_} row_ror:8 row_mask:0xf bank_mask:0xf")
    sent_check(chk, G + 8, 4, False)
    a(f"v_cndmask_b32 v{l_}, v{l_}, v{t[12]}, {sr(sX35)}")
    sent_check(chk, G + 12, 4, False)
    a(f"v_rcp_f32 v{l_}, v{l_}")
    a(f"v_cmp_eq_u32 vcc, -1, v{chk}")
    for j in range(4): a(f"v_cndmask_b32 v{D0+j}, v{D0+j}, v{D1+j}, {sr(sH5)}")
    for j in range(4): a(f"v_mul_f32 v{D0+j}, v{l_}, v{D0+j}")
    a(f"v_cvt_pk_bf16_f32 v{D0}, v{D0}, v{D0+1}"); a(f"v_cvt_pk_bf16_f32 v{D0+1}, v{D0+2}, v{D0+3}")
    retry("L_e2", P["RSLEEP"], "E2")
    a(f"ds_write_b64 v{A['OXW']}, {vr(D0,2)}")
    stamp("E2ok")
    def l0_o():
        tile_wait(3); rd_wo()
        lds_wait(FL_I1, 1, name="i1")
        a(f"v_readfirstlane_b32 s{sMode}, v{t[3]}"); a("s_nop 0"); a(f"s_sub_u32 s{sMode}, s{sMode}, 1")
    first_layer(l0_o)
    sync(FL_O, "o")
    rd_xb(OX)
    gemm8(TT, XB, pre=lambda ks: lgkm(3 - ks))
    merge_tiles()
    tag_into(ACC, ACC, sTA)
    store_mode(f"global_store_dwordx4 v{A['E3s']}, {vr(ACC,4)}, {sr(sWS)}")
    stamp("E3st")
    def xs_poll(areg, name):
        lp = a.newlabel("xs")
        execm(MC8)
        a.label(lp)
        for ks in range(4): a(f"global_load_dwordx4 {vr(XS_B+4*ks,4)}, v{areg}, {sr(sL)} offset:{ks*512} sc1")
        for ks in range(4):
            a(f"s_waitcnt vmcnt({3-ks})")
            sent_check(t[1], XS_B + 4*ks, 4, ks == 0)
        a(f"v_cmp_eq_u32 vcc, -1, v{t[1]}")
        retry(lp, 0, name)
        execm(FULL)
    lf_no = a.newlabel("nof"); lf_end = a.newlabel("fend")
    a(f"s_cmp_ge_u32 s{sR}, 28"); a(f"s_cbranch_scc1 {lf_no}")
    first_layer(lambda: tile_wait(4))
    tr_read_std(TT, A["TRS"], R0)
    sync(FL_RED, "red1", arrive=False, target=1)
    stamp("red1")
    xs_poll(A["XSl"], "xs1")
    a("s_waitcnt lgkmcnt(0)")
    stamp("xs1")
    gemm8(TT, XS_B, fill=lambda n: lds_arrive(FL_XS) if n == 1 else None)
    def store_c1():
        tag_into(G, ACC, sTB); tag_into(G+4, ACC+4, sTB)
        execm(MEQ8)
        a(f"global_store_dwordx4 v{A['C1s']}, {vr(G,4)}, {sr(sWS)} sc1")
        a(f"global_store_dwordx4 v{A['C1s']}, {vr(G+4,4)}, {sr(sWS)} offset:64 sc1")
        execm(FULL)
    first_layer(store_c1)
    execm(MC8)
    for j in range(4): a(f"v_cvt_pk_bf16_f32 v{G+8+j}, v{ACC+2*j}, v{ACC+2*j+1}")
    for j in range(4): a(f"v_min_u32 v{G+8+j}, -2, v{G+8+j}")
    a(f"global_store_dwordx4 v{A['E5s']}, {vr(G+8,4)}, {sr(sL)} sc1")
    execm(FULL)
    stamp("E5st")
    SA = G + 16
    K5 = [0, 256, 2048, 2304]
    def e5_issue():
        a(f"global_load_dwordx4 {vr(SA,4)}, v{A['S1l']}, {sr(sL)} sc1")
        ld4(G, A["E5l"], sL, K5)
    def c1_gather():
        a(f"v_bfe_u32 v{t[11]}, v0, 4, 1"); a(f"v_lshrrev_b32 v{t[12]}, 5, v0"); a(f"v_bfe_u32 v{t[13]}, v0, 3, 1")
        addr("C1l", [(t[11], 64), (t[12], 32), (t[13], 16)], [(sR, 4096), (sW, 1024)], EC1)
        if P["TIMING"] and not P["LIGHT"]: a(f"s_memtime {sr(loop_pairs[e5go_idx])}")
        lc1 = a.newlabel("c1"); a.label(lc1)
        for j in range(8): a(f"global_load_dwordx4 {vr(ACC+4*j,4)}, v{A['C1l']}, {sr(sWS)} offset:{j*128} sc1")
        e5_issue()
        for j in range(8):
            a(f"s_waitcnt vmcnt({12-j})")
            tag_check(chk, ACC+4*j, sTB, j == 0)
            if j == 1:
                a(f"v_pk_add_f32 {vr(C1,2)}, {vr(ACC,2)}, {vr(ACC+4,2)}"); a(f"v_pk_add_f32 {vr(C1+2,2)}, {vr(ACC+2,2)}, {vr(ACC+6,2)}")
            if j > 1:
                a(f"v_pk_add_f32 {vr(C1,2)}, {vr(C1,2)}, {vr(ACC+4*j,2)}"); a(f"v_pk_add_f32 {vr(C1+2,2)}, {vr(C1+2,2)}, {vr(ACC+4*j+2,2)}")
        tag_finish(chk)
        retry(lc1, P["RSLEEP"], "c1")
        a("s_branch L_e5p")
    e5go_idx = len(stamp_names)
    go(FL_G5, "g5", c1_gather, lambda: tr_read_std(TT, A["TRS"], R1))
    stamp("E5go")
    a.label("L_e5")
    e5_issue()
    a.label("L_e5p")
    s2_, s1_ = t[8], t[10]
    a(f"v_mov_b32 v{t[11]}, {f32(GK1):#x}")
    a("s_waitcnt vmcnt(3)")
    stamp("E5f")
    mfma(DD, SEL1, G, None)
    dpp("v_add_f32", s1_, SA+2, SA+2, "row_ror:8"); dpp("v_add_f32", s2_, SA, SA, "row_ror:8")
    a("s_waitcnt vmcnt(2)"); mfma(DD, SEL2, G + 4, DD)
    a(f"v_mov_b32 v{t[12]}, v{s1_}"); a(f"v_mov_b32 v{t[13]}, v{s2_}")
    a("s_waitcnt vmcnt(1)"); mfma(DD, SEL1, G + 8, DD)
    a(f"v_permlane16_swap_b32 v{s1_}, v{t[12]}"); a(f"v_permlane16_swap_b32 v{s2_}, v{t[13]}")
    a("s_waitcnt vmcnt(0)"); mfma(DD, SEL2, G + 12, DD)
    a(f"v_add_f32 v{s1_}, v{s1_}, v{t[12]}"); a(f"v_add_f32 v{s2_}, v{s2_}, v{t[13]}")
    red2(32, [s1_, s2_], [t[12], t[13]], mid=lambda: a(f"v_xor_b32 v{t[1]}, s{sTW}, v{SA+1}"))
    a(f"v_mul_f32 v{s1_}, s{sInvN}, v{s1_}"); a(f"v_mul_f32 v{s2_}, s{sInvN}, v{s2_}")
    a(f"v_bitop3_b32 v{t[1]}, v{t[1]}, v{SA+3}, s{sTW} bitop3:0xf6")
    a(f"v_fma_f32 v{s2_}, -v{s1_}, v{s1_}, v{s2_}"); a(f"v_max_f32 v{s2_}, 0, v{s2_}")
    a(f"v_cmp_ne_u32 vcc, 0, v{t[1]}")
    a(f"v_add_f32 v{t[12]}, s{sEps}, v{s2_}"); a(f"v_rsq_f32 v{t[12]}, v{t[12]}")
    Z = G + 20; U = G + 24
    for j in range(2): a(f"v_fma_f32 v{Z+j}, -v{s1_}, v{C1+j}, v{DD+j}")
    a(f"v_mul_f32 v{s2_}, v{s2_}, v{t[12]}")
    a(f"v_cndmask_b32 v{chk}, 0, -1, vcc")
    a(f"v_fma_f32 v{s2_}, v{s2_}, v{t[12]}, s{sEps}")
    a(f"v_rsq_f32 v{s2_}, v{s2_}")
    for j in range(2, 4): a(f"v_fma_f32 v{Z+j}, -v{s1_}, v{C1+j}, v{DD+j}")
    a(f"v_mul_f32 v{s2_}, v{s2_}, v{t[12]}")
    for j in range(4): a(f"v_fma_f32 v{Z+j}, v{Z+j}, v{s2_}, v{B1+j}")
    for j in range(4): a(f"v_mul_f32 v{U+j}, v{Z+j}, v{Z+j}")
    for j in range(4): a(f"v_fma_f32 v{U+j}, v{U+j}, s{sG2}, v{t[11]}")
    for j in range(4): a(f"v_mul_f32 v{U+j}, v{U+j}, v{Z+j}")
    for j in range(4): a(f"v_exp_f32 v{U+j}, v{U+j}")
    for j in range(4): a(f"v_add_f32 v{U+j}, 1.0, v{U+j}")
    for j in range(4): a(f"v_rcp_f32 v{U+j}, v{U+j}")
    sent_check(chk, G, 16, False)
    a(f"v_cmp_eq_u32 vcc, -1, v{chk}")
    for j in range(4): a(f"v_mul_f32 v{Z+j}, v{Z+j}, v{U+j}")
    a(f"v_cvt_pk_bf16_f32 v{Z}, v{Z}, v{Z+1}"); a(f"v_cvt_pk_bf16_f32 v{Z+1}, v{Z+2}, v{Z+3}")
    retry("L_e5", P["RSLEEP"], "E5")
    a(f"ds_write_b64 v{A['HXW']}, {vr(Z,2)}")
    stamp("E5ok")
    def l0_h():
        tile_wait(5); tr_read_std(TT, A["TRS"], R1)
    first_layer(l0_h)
    sync(FL_H, "h")
    rd_xb(HX)
    gemm8(TT, XB, pre=lambda ks: lgkm(3 - ks))
    merge_tiles()
    tag_into(ACC, ACC, sTB)
    store_mode(f"global_store_dwordx4 v{A['E3s']}, {vr(ACC,4)}, {sr(sWS)}")
    a.label(lf_end)
    def no_ffn():
        sync(FL_RED, "red1b", arrive=False, target=1)
        sync(FL_G5, "g5b", arrive=False, target=0)
        sync(FL_H, "hb", target=0)
        back(lf_end)
    a.cold(lf_no, no_ffn)
    stamp("E6st")
    a(f"s_cmp_lg_u32 s{sLay}, 0"); a("s_cbranch_scc1 L_fin2")
    a(f"v_add_u32 v{t[8]}, {XSB-XSA:#x}, v{A['XSl']}")
    lds_wait(FL_RED, 2, name="red2")
    stamp("red2")
    xs_poll(t[8], "xs2")
    stamp("xs2")
    nst = len(stamp_names)
    dump_stamps(nst)
    next_layer()
    a(f"s_mov_b32 s{sSq}, 8")
    a("s_branch L_layer")
    a.label("L_fin2")
    dump_stamps(nst)
    a.label("L_dump")
    if P["TIMING"]:
        a(f"s_memrealtime {sr(free_pairs[1])}"); a(f"s_memtime {sr(free_pairs[0])}"); a("s_waitcnt lgkmcnt(0)")
        a(f"v_writelane_b32 v{vTS}, s{free_pairs[1]}, 58"); a(f"v_writelane_b32 v{vTS}, s{free_pairs[0]}, 59")
        a(f"s_lshl_b32 s{sT0}, s2, 3"); a(f"s_add_u32 s{sT0}, s{sT0}, s{sW}"); a(f"s_lshl_b32 s{sT0}, s{sT0}, 9")
        a(f"s_add_u32 s{sT0}, s{sT0}, {TSOFF:#x}")
        if P["WSOFF"]:
            a(f"s_load_dwordx2 {sr(sWS)}, s[0:1], 96"); a("s_waitcnt lgkmcnt(0)")
        a(f"v_lshlrev_b32 v{t[0]}, 2, v0"); a(f"v_add_u32 v{t[0]}, s{sT0}, v{t[0]}")
        a(f"global_store_dword v{t[0]}, v{vTS}, {sr(sWS)}")
        a(f"global_store_dword v{t[0]}, v{vRC}, {sr(sWS)} offset:256")
    a.label("L_end")
    a("s_endpgm")
    a.flush_cold()

    a.hists = []; role[0] = 1
    def setflag(off): a(f"ds_write_b32 v{A['FLG']}, v{vONE} offset:{off}")
    def provide(load, dst_off, base, name, poll):
        def f():
            X = G + 16; s2, s1 = G + 24, G + 26
            lp = a.newlabel("pv"); a.label(lp)
            load(X)
            a("s_waitcnt vmcnt(0)")
            a(f"v_mov_b32 v{s2}, 0"); a(f"v_mov_b32 v{s1}, 0"); a(f"v_mov_b32 v{G+28}, 0x3f803f80")
            if poll:
                sent_check(chk, X, 8, True); a(f"v_cmp_eq_u32 vcc, -1, v{chk}")
            for j in range(8):
                a(f"v_dot2_f32_bf16 v{s2}, v{X+j}, v{X+j}, v{s2}"); a(f"v_dot2_f32_bf16 v{s1}, v{X+j}, v{G+28}, v{s1}")
            if poll: retry(lp, 0, name)
            dpp("v_add_f32", s2, s2, s2, "row_ror:8"); dpp("v_add_f32", s1, s1, s1, "row_ror:8")
            red2(16, [s2, s1], [s2+1, s1+1]); red2(32, [s2, s1], [s2+1, s1+1])
            a(f"v_mov_b32 v{s2+1}, s{sTW}"); a(f"v_mov_b32 v{s1+1}, s{sTW}")
            execm(0xFF, 0)
            a(f"global_store_dwordx4 v{A['STs']}, {vr(s2,4)}, {sr(base)} offset:{dst_off} sc1")
            execm(FULL)
        only_if(f"s_cmp_eq_u32 s{sR}, 28", f, "pv")
    def xs_load(areg):
        def f(X):
            a(f"global_load_dwordx4 {vr(X,4)}, v{areg}, {sr(sL)} sc1")
            a(f"global_load_dwordx4 {vr(X+4,4)}, v{areg}, {sr(sL)} offset:1024 sc1")
        return f
    def watch(areg, off, lanes8, delay, name, sleep=0):
        lp = a.newlabel("can")
        if lanes8: execm(0xFF, 0)
        a.label(lp)
        a(f"global_load_dword v{G}, v{areg}, {sr(sL)} offset:{off} sc1")
        a("s_waitcnt vmcnt(0)")
        a(f"v_cmp_ne_u32 vcc, s{sTW}, v{G}")
        retry(lp, sleep, name)
        if lanes8: execm(FULL)
        if delay: a(f"s_sleep {delay}")
    def announce(base, off):
        a(f"s_mov_b64 exec, {sr(sCM)}")
        a(f"global_store_dword v{A['C8s']}, v{vTW}, {sr(base)} offset:{off} sc1")
        execm(FULL)
    def reduce_stage(tg, nprod, name, ann):
        SU = ACC
        def issue(X):
            for j in range(4):
                if j == 3 and nprod == 28:
                    for k in range(4): a(f"v_mov_b32 v{X+12+k}, s{tg+k}")
                    execm(FULL, 0)
                a(f"global_load_dwordx4 {vr(X+4*j,4)}, v{A['E3l']}, {sr(sWS)} offset:{j*1024} sc1")
            if nprod == 28: execm(FULL)
        def check(X, younger):
            for j in range(4):
                a(f"s_waitcnt vmcnt({3-j+younger})")
                tag_check(chk, X+4*j, tg, j == 0)
                if j == 3: tag_finish(chk)
                if j == 1:
                    a(f"v_pk_add_f32 {vr(SU,2)}, {vr(X,2)}, {vr(X+4,2)}"); a(f"v_pk_add_f32 {vr(SU+2,2)}, {vr(X+2,2)}, {vr(X+6,2)}")
                if j > 1:
                    a(f"v_pk_add_f32 {vr(SU,2)}, {vr(SU,2)}, {vr(X+4*j,2)}"); a(f"v_pk_add_f32 {vr(SU+2,2)}, {vr(SU+2,2)}, {vr(X+4*j+2,2)}")
            a(f"v_permlane32_swap_b32 v{SU}, v{SU+2}"); a(f"v_permlane32_swap_b32 v{SU+1}, v{SU+3}")
            a(f"v_pk_add_f32 {vr(SU,2)}, {vr(SU,2)}, {vr(SU+2,2)}")
        lr = a.newlabel("red")
        if P["RPIPE"]:
            done = a.newlabel("redd")
            issue(G)
            a.label(lr)
            issue(G + 16); check(G, 4)
            a(f"s_cbranch_vccz {done}")
            issue(G); check(G + 16, 4)
            retry(lr, 0, name)
            a.label(done)
        else:
            a.label(lr)
            issue(G); check(G, 0)
            retry(lr, 0, name)
        if ann: ann()
        red2(16, [SU, SU+1], [SU+2, SU+3])
        dpp("v_add_f32", SU, SU, SU, "row_ror:8"); dpp("v_add_f32", SU+1, SU+1, SU+1, "row_ror:8")
        a(f"v_pk_add_f32 {vr(SU,2)}, {vr(SU,2)}, {vr(XRES,2)}")
        execm(0xFF)
        a(f"v_cvt_pk_bf16_f32 v{SU}, v{SU}, v{SU+1}")
        return SU
    def finish_x(x, areg):
        a(f"v_min_u32 v{x}, -2, v{x}")
        store_mode(f"global_store_dword v{areg}, v{x}, {sr(sL)}")
        a(f"v_lshlrev_b32 v{XRES}, 16, v{x}"); a(f"v_and_b32 v{XRES+1}, 0xffff0000, v{x}")
        execm(FULL)
    a.label("L_reducer")
    a("s_setprio 2")
    a(f"v_lshlrev_b32 v{t[0]}, 2, v0"); a(f"v_add_u32 v{t[0]}, {FL}, v{t[0]}"); a(f"v_mov_b32 v{t[1]}, 0")
    a(f"ds_write_b32 v{t[0]}, v{t[1]}")
    lane_bits()
    I1, I2, I5, IM, IC = KK, KK + 2, KK + 4, KK + 6, KK + 7
    NEG = KK + 8; vTW = KK + 12; XA, XG, XO = KK + 13, KK + 14, KK + 15; XD = KK + 16
    for j in range(4): a(f"v_mov_b32 v{NEG+j}, -1")
    addr(I1, [(cKQ, 65536), (cC, 16)], [(sG, 16384), (sS, 2048), (sI, 256)], E1)
    a(f"v_add_u32 v{I1+1}, {4*65536:#x}, v{I1}")
    addr(I2, [(cKQ, 16384), (cC, 16)], [(sG, 131072), (sI, 2048), (sS, 256)], E2)
    a(f"v_add_u32 v{I2+1}, {4*16384:#x}, v{I2}")
    addr(IM, [(vL, 16)], [(sG, 8192), (sI, 1024), (sS, 128)], ML)
    addr(IC, [(vL, 16)], [(sG, 16384), (sS, 2048), (sI, 256)], ECQ)
    def init_slots(base, with_c):
        for rg in (I1, I1 + 1, I2, I2 + 1): a(f"global_store_dwordx4 v{rg}, {vr(NEG,4)}, {sr(base)} sc1")
        execm(0xF, 0)
        a(f"global_store_dwordx4 v{IM}, {vr(NEG,4)}, {sr(base)} sc1")
        if with_c:
            execm(0xFFFF, 0)
            a(f"global_store_dwordx4 v{IC}, {vr(NEG,4)}, {sr(base)} sc1")
        execm(FULL)
    def init_e5(base):
        def f():
            for rg in (I5, I5 + 1): a(f"global_store_dwordx4 v{rg}, {vr(NEG,4)}, {sr(base)} sc1")
        only_if(f"s_cmp_lt_u32 s{sR}, 28", f, "e")
    a("s_waitcnt lgkmcnt(0)")
    load_epoch()
    init_slots(sWS, True)
    a("s_barrier")
    addr(I5, [(cH5, 4096), (cL31, 16)], [(sR, 16384), (sI, 512)], E5)
    a(f"v_add_u32 v{I5+1}, {2*4096:#x}, v{I5}")
    addr("E3l", [(vL, 16)], [(sI, 131072), (sR, 4096)], E3)
    a(f"s_and_b32 s{sT2}, s{sR}, 3"); a(f"s_bfe_u32 s{sT3}, s{sR}, 0x10002")
    addr("XSs", [(cB8, 16), (cH5, 4)], [(sI, 2048), (sG, 512), (sT2, 128), (sT3, 8)], XSA)
    a(f"v_add_u32 v{A['XSs2']}, {XSB-XSA:#x}, v{A['XSs']}")
    addr(x0, [(cH5, 4)], [(sI, 256), (sR, 8)], 0)
    a(f"v_lshl_add_u32 v{A['OUT']}, v{cB8}, 11, v{x0}")
    XC = KK + 20
    addr(XC, [(vL, 128)], [(sG, 8192)], CAN2)
    if P["C2N"] == 8: addr("C2l", [(cB8, 1024)], [(sG, 8192), (sS, 128)], CAN2)
    else: addr("C2l", [(vL, 128)], [(sG, 8192)], CAN2)
    addr("C8l", [(cB8, 128)], [], CAN1)
    addr("C8s", [], [(sI, 128)], CAN1)
    addr("STs", [(cB8, 16)], [(sI, 128)], ST1)
    addr("XSw", [(vL, 16)], [(sI, 2048)], XSA)
    a(f"v_add_u32 v{A['XSw2']}, {XSB-XSA:#x}, v{A['XSw']}")
    addr(XA, [], [(sG, 1024), (sI, 128), (sS, 16)], XID)
    addr(XG, [(vL, 16)], [(sG, 1024)], XID)
    a(f"v_bfe_u32 v{x1}, v0, 3, 2")
    addr(XO, [(x1, 1024), (cB8, 16)], [(sI, 128)], XID)
    a(f"v_lshrrev_b32 v{x1}, 3, v0")
    addr(x2, [(cB8, 2048), (x1, 32)], [(sI, 256)], 0)
    sXcc = sKap; sXt = sEps; sL1 = sInvN
    assert sL1 % 2 == 0
    a(f"s_add_u32 s{sL1}, s{sWS}, {LSTRIDE:#x}"); a(f"s_addc_u32 s{sL1+1}, s{sWS+1}, 0")
    a(f"s_getreg_b32 s{sXcc}, hwreg(HW_REG_XCC_ID)"); a(f"s_and_b32 s{sXcc}, s{sXcc}, 15")
    if P["FORCE_SLOW"]: a(f"s_mov_b32 s{sXcc}, s2")
    a(f"s_cmp_eq_u32 s{sR}, 29"); a(f"s_cselect_b32 s{sCM}, 1, 0"); a(f"s_mov_b32 s{sCM+1}, 0")
    a("s_waitcnt lgkmcnt(0)")
    set_tags()
    a(f"s_xor_b32 s{sXt}, s{sEP}, 0x5bd1e995"); a(f"s_add_u32 s{sXt}, s{sXt}, 0x9e3779b9")
    a(f"v_mov_b32 v{XD}, s{sXt}"); a(f"v_mov_b32 v{XD+1}, s{sXcc}"); a(f"v_not_b32 v{XD+2}, v{XD}"); a(f"v_mov_b32 v{XD+3}, s{sXcc}")
    a(f"v_mov_b32 v{vTW}, s{sTW}")
    a("s_waitcnt vmcnt(0)")
    setflag(FL_C)
    if P["XEARLY"]:
        execm(1, 0)
        a(f"global_store_dwordx4 v{XA}, {vr(XD,4)}, {sr(sWS)} sc1")
        execm(FULL)
    if P["TIMING"]:
        for p_ in loop_pairs[:10]: a(f"s_mov_b32 s{p_}, 0")
    stamp("a_xid", red_names)
    def x0_load(X):
        a(f"global_load_dwordx4 {vr(X,4)}, v{x2}, {sr(sX)}")
        a(f"global_load_dwordx4 {vr(X+4,4)}, v{x2}, {sr(sX)} offset:16")
    provide(x0_load, STQ - ST1, sWS, "pv0", False)
    init_e5(sWS)
    if not P["XEARLY"]: a(f"global_load_dword v{G+5}, v{XG}, {sr(sWS)} sc1")
    a(f"global_load_dword v{G}, v{XC}, {sr(sWS)} sc1")
    a(f"global_load_dword v{XRES+1}, v{A['OUT']}, {sr(sX)}")
    a(f"global_load_dword v{B2+1}, v{x0}, {sr(sB2)}")
    lds_wait(FL_PRE, 1, sleep=1, name="a_pre")
    if not P["XEARLY"]:
        execm(1, 0)
        a(f"global_store_dwordx4 v{XA}, {vr(XD,4)}, {sr(sWS)} sc1")
        execm(FULL)
    def xid_poll(areg, name, sleep):
        lxw = a.newlabel("xw"); a.label(lxw)
        a(f"global_load_dwordx4 {vr(G,4)}, v{areg}, {sr(sWS)} sc1")
        a("s_waitcnt vmcnt(0)")
        a(f"v_not_b32 v{G+2}, v{G+2}"); a(f"v_xor_b32 v{G}, s{sXt}, v{G}"); a(f"v_xor_b32 v{G+2}, s{sXt}, v{G+2}")
        a(f"v_xor_b32 v{G+3}, v{G+3}, v{G+1}"); a(f"v_or3_b32 v{G}, v{G}, v{G+2}, v{G+3}")
        a(f"v_cmp_ne_u32 vcc, 0, v{G}")
        retry(lxw, sleep, name)
    for _ in range(P["XPRE"] // 8): a("s_sleep 8")
    xid_poll(XG, "xid", P["XSL"])
    stamp("a_xi", red_names)
    if P["DX"]: a(f"s_sleep {P['DX']}")
    setflag(FL_XI)
    a(f"v_lshlrev_b32 v{XRES}, 16, v{XRES+1}"); a(f"v_and_b32 v{XRES+1}, 0xffff0000, v{XRES+1}")
    a(f"v_lshlrev_b32 v{B2}, 16, v{B2+1}"); a(f"v_and_b32 v{B2+1}, 0xffff0000, v{B2+1}")
    lds_wait(FL_VG, 4, sleep=1, name="a_vg")
    init_slots(sL1, False); init_e5(sL1)
    xid_poll(XO, "xid2", 2)
    a(f"v_cmp_ne_u32 vcc, s{sXcc}, v{G+1}")
    a(f"s_cmp_eq_u64 vcc, 0"); a(f"s_cselect_b32 s{sMode}, 1, 0")
    a(f"v_add_u32 v{t[2]}, {LSTRIDE:#x}, v{A['XSs']}")
    execm(0xFF)
    for rg in (A['XSs'], A['XSs2'], t[2]): store_mode(f"global_store_dword v{rg}, v{NEG}, {sr(sWS)}")
    execm(FULL)
    a(f"global_load_dword v{G+1}, v{A['C2l']}, {sr(sL1)} sc1")
    execm(0xFF, 0)
    a(f"global_load_dword v{G+2}, v{A['C8l']}, {sr(sWS)} offset:{CAN5-CAN1} sc1")
    a(f"global_load_dword v{G+3}, v{A['C8l']}, {sr(sL1)} sc1")
    a(f"global_load_dword v{G+4}, v{A['C8l']}, {sr(sL1)} offset:{CAN5-CAN1} sc1")
    execm(FULL)
    a(f"s_add_u32 s{sT0}, s{sMode}, 1"); a(f"v_mov_b32 v{t[4]}, s{sT0}")
    a("s_waitcnt vmcnt(0)")
    a(f"ds_write_b32 v{A['FLG']}, v{t[4]} offset:{FL_I1}")
    def w5(n, nm):
        def f():
            lds_wait(FL_XS, n, name=nm + "x")
            if P["M5"] or n == 8: watch(A["C8l"], CAN5 - CAN1, True, P["D5"] if n != 8 else P["D50"], nm)
            else: a(f"s_sleep {P['D5']}")
        only_if(f"s_cmp_lt_u32 s{sR}, 28", f, "w5")
    lds_wait(FL_OW, 4, sleep=1, name="a_ow")
    if P["C2AT"]: lds_wait(FL_T + 12, 1, sleep=1, name="a_t3")
    for _ in range(P["C2PRE"] // 8): a("s_sleep 8")
    watch(XC, 0, False, P["D20"], "a_c2", P["C2SL"]); setflag(FL_G2)
    stamp("a_g2", red_names)
    a("s_sleep 2")
    ld4(G, A["E3l"], sWS, K1); xs_load(A["XSw"])(G + 16)
    lds_wait(FL_O, 4, sleep=1, name="a_o")
    stamp("r_o", red_names)
    x = reduce_stage(sTA, 32, "r_red1", lambda: announce(sL, CAN5 - CAN1))
    finish_x(x, A["XSs"]); lds_arrive(FL_RED)
    stamp("r_x1", red_names)
    provide(xs_load(A["XSw"]), 0, sL, "pv1", True)
    a(f"v_pk_add_f32 {vr(XRES,2)}, {vr(XRES,2)}, {vr(B2,2)}")
    w5(8, "a_c5"); setflag(FL_G5)
    stamp("a_g5", red_names)
    a("s_sleep 2")
    xs_load(A["XSw2"])(G + 16)
    lds_wait(FL_H, 4, sleep=1, name="a_h")
    stamp("r_h", red_names)
    x = reduce_stage(sTB, 28, "r_red2", lambda: announce(sL1, 0))
    finish_x(x, A["XSs2"]); lds_arrive(FL_RED)
    stamp("r_x2", red_names)
    provide(xs_load(A["XSw2"]), STQ - ST1, sL1, "pv2", True)
    nred = len(red_names)
    dump_stamps(nred)
    next_layer()
    def st1(name):
        if P["TIMING"] and name in red_names: a(f"s_memtime {sr(loop_pairs[red_names.index(name)])}")
    a(f"s_cmp_lt_u32 s{sR}, 28"); a(f"s_cselect_b32 s{sSq}, 12, 8")
    lds_wait(FL_XS, f"s{sSq}", name="a_c1x")
    if P["M1"]: watch(A["C8l"], 0, True, P["D1"], "a_c1'")
    else: a(f"s_sleep {P['D1']}")
    a("s_barrier")
    st1("a_xi")
    if P["M2"]:
        lds_wait(FL_Q, 8, name="a_q'")
        watch(A["C2l"], 0, P["C2N"] == 8, P["D2"], "a_c2'")
    else:
        lds_wait(FL_OW, 8, name="a_q'"); a(f"s_sleep {P['D2']}")
    a("s_barrier")
    st1("a_g2")
    a("s_sleep 2")
    xs_load(A["XSw"])(G + 16)
    a("s_barrier")
    st1("r_o")
    x = reduce_stage(sTA, 32, "r_red1'", lambda: announce(sL, CAN5 - CAN1))
    finish_x(x, A["XSs"])
    a("s_barrier")
    st1("r_x1")
    provide(xs_load(A["XSw"]), 0, sL, "pv3", True)
    a(f"v_pk_add_f32 {vr(XRES,2)}, {vr(XRES,2)}, {vr(B2,2)}")
    w5(16, "a_c5'"); a("s_barrier")
    st1("a_g5")
    a("s_barrier")
    st1("r_h")
    x = reduce_stage(sTB, 28, "r_red2'", None)
    a(f"global_store_dword v{A['OUT']}, v{x}, {sr(sOUT)}")
    execm(FULL)
    st1("r_x2")
    def ep():
        a(f"s_add_u32 s{sT0}, s{sEP}, 1"); a(f"v_mov_b32 v{t[0]}, s{sT0}"); a(f"v_mov_b32 v{t[1]}, {EPOCH:#x}")
        execm(1, 0)
        a(f"global_store_dword v{t[1]}, v{t[0]}, {sr(sWS)}")
        execm(FULL)
    only_if("s_cmp_eq_u32 s2, 0", ep, "ep")
    dump_stamps(nred)
    a("s_branch L_dump" if P["TIMING"] else "s_endpgm")
    a.flush_cold()

    a.hists = []; role[0] = 2
    a.label("L_loader")
    fl = " " + P["FLAV"] if P["FLAV"] else ""
    a("s_setprio 3")
    a(f"v_lshrrev_b32 v{t[0]}, 4, v0"); a(f"v_and_b32 v{t[1]}, 15, v0")
    a(f"v_lshlrev_b32 v{t[2]}, 2, v{t[0]}"); a(f"v_xor_b32 v{t[1]}, v{t[1]}, v{t[2]}"); a(f"v_lshlrev_b32 v{t[1]}, 4, v{t[1]}")
    offs = {}
    for k, stride in enumerate((8192, 256, 2048, 7168)):
        offs[stride] = t[8+k]
        a(f"s_mov_b32 s{sT0}, {stride}"); a(f"v_mad_u32_u24 v{t[8+k]}, v{t[0]}, s{sT0}, v{t[1]}")
    uni([(sI, 1048576), (sR, 256)], 0)
    a("s_waitcnt lgkmcnt(0)")
    a(f"s_add_u32 s{sWQ}, s{sWQ}, s{sT0}"); a(f"s_addc_u32 s{sWQ+1}, s{sWQ+1}, 0")
    def addbase(sb, terms, const):
        uni(terms, const)
        a(f"s_add_u32 s{sb}, s{sb}, s{sT0}"); a(f"s_addc_u32 s{sb+1}, s{sb+1}, 0")
    tiles = [(sWQ, 8192, R0), (sK, 256, R1), (sVv, 256, R2), (sWO, 2048, R3), (sW1, 7168, R0), (sW2, 2048, R1)]
    def lstamp(k):
        if P["TIMING"]:
            a(f"s_memtime {sr(free_pairs[0])}"); a("s_waitcnt lgkmcnt(0)"); a(f"v_writelane_b32 v{vTS}, s{free_pairs[0]}, {k}")
    def signal(k):
        a(f"ds_write_b32 v{A['FLG']}, v{vONE} offset:{FL_T + 4*k}"); lstamp(k)
    def issue(n):
        sb, stride, region = tiles[n // 32]; j = n % 32
        a(f"s_mov_b32 m0, {region + j*1024}")
        if j > 0:
            a(f"s_add_u32 s{sb}, s{sb}, {4*stride}"); a(f"s_addc_u32 s{sb+1}, s{sb+1}, 0")
        a(f"global_load_lds_dwordx4 v{offs[stride]}, {sr(sb)}{fl}")
    def step(n, depth, sigs):
        if n >= depth: a(f"s_waitcnt vmcnt({depth-1})")
        done = n - (depth - 1)
        if done >= 32 and done % 32 == 0 and done // 32 - 1 in sigs: signal(done // 32 - 1)
        issue(n)
    for n in range(32): issue(n)
    addbase(sK, [(sI, 4194304), (sG, 1048576), (sS, 32768)], 786432)
    addbase(sVv, [(sI, 4194304), (sG, 1048576), (sS, 32768)], 786432)
    addbase(sWO, [(sR, 262144), (sI, 256)], 0)
    addbase(sW1, [(sI, 917504), (sR, 256)], 0)
    addbase(sW2, [(sR, 262144), (sI, 256)], 0)
    a("s_barrier")
    DL, DH, DO, DW = P["DL"], P["DH"], P["DO"], P["DW"]
    a(f"s_waitcnt vmcnt({P['WQFIRST']})"); setflag(FL_PRE)
    def switch_chain(n0, n1, d_a, d_b, flag, target, entry_sigs):
        labs = [a.newlabel("sw") for _ in range(n0, n1)]; end = a.newlabel("swe")
        for n in range(n0, n1):
            if (n - n0) % 2 == 0:
                a(f"ds_read_b32 v{t[3]}, v{A['FLG']} offset:{flag}")
                a("s_waitcnt lgkmcnt(0)")
                a(f"v_cmp_le_u32 vcc, {target}, v{t[3]}")
                a(f"s_cbranch_vccnz {labs[n-n0]}")
            step(n, d_a, range(6))
        a(f"s_branch {end}")
        for n in range(n0, n1):
            a.label(labs[n - n0])
            step(n, d_b, range(6))
        a.label(end)
    if P["STREAM"]:
        for n in range(32, 32 + P["XB"]): issue(n)
        a(f"s_waitcnt vmcnt({P['XB']})"); signal(0)
        for n in range(32 + P["XB"], 128): step(n, DH, (1, 2))
        a(f"s_cmp_ge_u32 s{sR}, 28"); a("s_cbranch_scc1 L_ldshort2")
        lds_wait(FL_WQC, 4, name="l_wq2")
        for n in range(128, 160): step(n, DH, (2, 3))
        lds_wait(FL_MODE, 4, name="l_k2")
        for n in range(160, 192): step(n, DH, (3, 4))
        a("s_waitcnt vmcnt(32)"); setflag(FL_T + 16)
        a("s_waitcnt vmcnt(0)"); signal(5)
        a("s_waitcnt lgkmcnt(0)")
        a("s_branch L_dump" if P["TIMING"] else "s_endpgm")
        a.label("L_ldshort2")
        a("s_waitcnt vmcnt(32)"); signal(2)
        a("s_branch L_ldshort")
    switch_chain(32, 96, DL, DH, FL_VG, 4, None)
    for n in range(96, 96 + P["XB"]): issue(n)
    a(f"s_waitcnt vmcnt({min(63, 32 + P['XB'])})"); setflag(FL_T + 4)
    a(f"s_waitcnt vmcnt({P['XB']})"); signal(2)
    switch_chain(96 + P["XB"], 128, DO, DW, FL_OW, 4, None)
    a(f"s_cmp_ge_u32 s{sR}, 28"); a("s_cbranch_scc1 L_ldshort")
    lds_wait(FL_WQC, 4, name="l_wq")
    for n in range(128, 160): step(n, DW, (3,))
    lds_wait(FL_MODE, 4, name="l_k")
    for n in range(160, 192): step(n, DW, (4,))
    a("s_waitcnt vmcnt(0)"); signal(5)
    a("s_waitcnt lgkmcnt(0)")
    a("s_branch L_dump" if P["TIMING"] else "s_endpgm")
    a.label("L_ldshort")
    a("s_waitcnt vmcnt(0)"); signal(3)
    a("s_waitcnt lgkmcnt(0)")
    a("s_branch L_dump" if P["TIMING"] else "s_endpgm")
    a.flush_cold()
    a.raw(f""".section .rodata,"a"
.p2align 6
.amdhsa_kernel {KN}
  .amdhsa_next_free_vgpr 256
  .amdhsa_next_free_sgpr 102
  .amdhsa_accum_offset 256
  .amdhsa_group_segment_fixed_size 0
  .amdhsa_kernarg_size 104
  .amdhsa_user_sgpr_count 2
  .amdhsa_user_sgpr_kernarg_segment_ptr 1
  .amdhsa_system_sgpr_workgroup_id_x 1
.end_amdhsa_kernel""")
    return a.text(), (stamp_names, pro_names, red_names, site_names), V.next, S.next, a.nops

if __name__ == "__main__":
    out = sys.argv[1]
    P = dict(DEFAULTS)
    for kv in sys.argv[2:]:
        k, val = kv.split("=")
        P[k] = val if k == "FLAV" else int(val)
    txt, names, nv, ns, nops = generate(P)
    hdr = open("interleave_layers__sliding_block_cached__mixer_channel_mlp__decode.s.ref").read().split("; @launch")[0]
    open(out, "w").write(hdr + txt)
    print("vgprs", nv, "sgprs", ns, "nops", nops, "lines", txt.count("\n"), "sites", len(names[3]), "stamps", len(names[0]))
```
